```python
import torch

def _softmax(x, axis=-1):
    return torch.softmax(x, dim=axis)
def _gelu(x):
    return torch.nn.functional.gelu(x, approximate="tanh")
def _silu(x):
    return torch.nn.functional.silu(x)
def _sigmoid(x):
    return torch.sigmoid(x)
def _layernorm(x, axis=-1, eps=1e-5):
    m = x.mean(dim=axis, keepdim=True)
    v = x.var(dim=axis, keepdim=True, unbiased=False)
    return (x - m) / torch.sqrt(v + eps)
def _scatter_add(tgt, idx, src, axis=0):
    return tgt.clone().index_add_(axis, idx, src)
def _segment_sum(src, seg, n):
    out = torch.zeros((n,) + src.shape[1:], dtype=src.dtype)
    return out.index_add_(0, seg, src)
def _pad(x, pw):
    flat = tuple(v for pair in reversed(pw) for v in pair)
    return torch.nn.functional.pad(x, flat)

kernel_name = 'concat_heads__sliding_block_cached__compressed_kv_cla__decode'

def setup_inputs():

    _w = (lambda a: (lambda t: t.to(torch.bfloat16) if t.is_floating_point() else t)(torch.as_tensor(a)))
    def _A_setup():
        B, Sq, D = 4, 1, 512
        Hq, Hkv, Sk, Dh = 32, 8, 8192, 128
        assert Hq % Hkv == 0, (Hq, Hkv)
        return {
            "x": _w((lambda *s: torch.randn(*s, dtype=torch.bfloat16) * 1.6)(B, Sq, D)),
            "k_cache": _w((lambda *s: torch.randn(*s, dtype=torch.bfloat16) * 1.6)(B, Hkv, Sk, Dh)),
            "v_cache": _w((lambda *s: torch.randn(*s, dtype=torch.bfloat16) * 0.05)(B, Hkv, Sk, Dh)),
            "wq": _w((lambda *s: torch.randn(*s, dtype=torch.bfloat16) * 1.6)(D, Hq * Dh) * (D ** -0.5)),
            "wo": _w((lambda *s: torch.randn(*s, dtype=torch.bfloat16) * 0.05)(Hq * Dh, D) * ((Hq * Dh) ** -0.5)),
        }
    _A_in = _A_setup()

    def _B_setup():
        B, H, Sq, Sk, D, M = 4, 32, 1, 8192, 128, 512
        Dc = 4 * D
        return {
            "x": _w((lambda *s: torch.randn(*s, dtype=torch.bfloat16) * 3.2)(B, Sq, M)),
            "c_kv": _w((lambda *s: torch.randn(*s, dtype=torch.bfloat16) * 0.1)(B, Sk, Dc)),
            "w_q": _w((lambda *s: torch.randn(*s, dtype=torch.bfloat16) * 6.4)(M, H, D) * (M ** -0.5)),
            "w_uk": _w((lambda *s: torch.randn(*s, dtype=torch.bfloat16) * 6.4)(Dc, H, D) * (Dc ** -0.5)),
            "w_uv": _w((lambda *s: torch.randn(*s, dtype=torch.bfloat16) * 0.1)(Dc, H, D) * (Dc ** -0.5)),
            "w_o": _w((lambda *s: torch.randn(*s, dtype=torch.bfloat16) * 0.1)(H, D, M) * ((H * D) ** -0.5)),
        }
    _B_in = _B_setup()

    return {
        "A_x": _A_in["x"],
        "A_k_cache": _A_in["k_cache"],
        "A_v_cache": _A_in["v_cache"],
        "A_wq": _A_in["wq"],
        "A_wo": _A_in["wo"],
        "B_x": _B_in["x"],
        "B_c_kv": _B_in["c_kv"],
        "B_w_q": _B_in["w_q"],
        "B_w_uk": _B_in["w_uk"],
        "B_w_uv": _B_in["w_uv"],
        "B_w_o": _B_in["w_o"],
    }

def reference(A_x, A_k_cache, A_v_cache, A_wq, A_wo, B_x, B_c_kv, B_w_q, B_w_uk, B_w_uv, B_w_o):
    def _A_ref(x, k_cache, v_cache, wq, wo):
        B, Sq, D = x.shape
        Hq, Dh = 32, 128
        Hkv, Sk = k_cache.shape[1], k_cache.shape[2]
        W = min(4096, max(256, Sk // 4))
        rep = Hq // Hkv
        q = (lambda x, *d: x.permute(*d))((x @ wq).reshape(B, Sq, Hq, Dh), 0, 2, 1, 3)
        k = (lambda x, n, axis: torch.repeat_interleave(x, n, dim=axis))(k_cache[:, :, Sk - W:, :], rep, axis=1)
        v = (lambda x, n, axis: torch.repeat_interleave(x, n, dim=axis))(v_cache[:, :, Sk - W:, :], rep, axis=1)
        scores = torch.einsum("bhqd,bhkd->bhqk", q, k) * (Dh ** -0.5)
        p = _softmax(scores, axis=-1)
        o = torch.einsum("bhqk,bhkd->bhqd", p, v)
        return (lambda x, *d: x.permute(*d))(o, 0, 2, 1, 3).reshape(B, Sq, Hq * Dh) @ wo

    def _B_ref(x, c_kv, w_q, w_uk, w_uv, w_o):
        B, Sq, M = x.shape[0], x.shape[1], x.shape[2]
        Sk = c_kv.shape[1]
        H, D = w_q.shape[1], w_q.shape[2]
        q = torch.einsum("bqm,mhd->bhqd", x, w_q)
        k = torch.einsum("bkc,chd->bhkd", c_kv, w_uk)
        v = torch.einsum("bkc,chd->bhkd", c_kv, w_uv)
        scores = torch.einsum("bhqd,bhkd->bhqk", q, k) * (D ** -0.5)
        off = Sk - Sq
        qi = torch.arange(Sq)[:, None]
        kj = torch.arange(Sk)[None, :]
        cmask = kj <= (qi + off)
        scores = torch.where(cmask[None, None], scores, -1e9)
        p = _softmax(scores, axis=-1)
        ctx = torch.einsum("bhqk,bhkd->bhqd", p, v)
        return torch.einsum("bhqd,hdm->bqm", ctx, w_o)

    a = _A_ref(A_x, A_k_cache, A_v_cache, A_wq, A_wo)
    b = _B_ref(B_x, B_c_kv, B_w_q, B_w_uk, B_w_uv, B_w_o)
    return torch.concatenate([a, b], axis=-1)
```

```python
import sys, struct

L = []
def e(s=""):
    L.append(s)
def c(s):
    L.append("    ; " + s)

KNAME = "concat_heads__sliding_block_cached__compressed_kv_cla__decode_kernel"

KA = dict(A_x=0, A_k=8, A_v=16, A_wq=24, A_wo=32, B_x=40, B_ckv=48, B_wq=56, B_wuk=64, B_wuv=72, B_wo=80, out=88, dbg=96, ws=104)

WS_QA   = 0x000000
WS_QB   = 0x008000
WS_QABS = 0x010000
WS_BSTAT= 0x030000
WS_ASTAT= 0x038000
WS_OA   = 0x040000
WS_CTXP = 0x050000
WS_OUTP = 0x0D0000
WS_APART= 0x200000
WS_BPART= 0x400000
WS_SIZE = 0x10000000

SCALE_LOG2E = 0.08838834764831845 * 1.4426950408889634

def f32hex(x):
    return "0x%08x" % struct.unpack("<I", struct.pack("<f", x))[0]

def kstart(name):
    e(".text")
    e(f".globl {name}")
    e(".p2align 8")
    e(f".type {name},@function")
    e(f"{name}:")

def kend(name, vgpr, sgpr=96, accum=None):
    if accum is None:
        accum = (vgpr + 3) // 4 * 4
    e("    s_endpgm")
    e('.section .rodata,"a"')
    e(".p2align 6")
    e(f".amdhsa_kernel {name}")
    e(f"  .amdhsa_next_free_vgpr {vgpr}")
    e(f"  .amdhsa_next_free_sgpr {sgpr}")
    e(f"  .amdhsa_accum_offset {accum}")
    e("  .amdhsa_group_segment_fixed_size 0")
    e("  .amdhsa_kernarg_size 112")
    e("  .amdhsa_user_sgpr_count 2")
    e("  .amdhsa_user_sgpr_kernarg_segment_ptr 1")
    e("  .amdhsa_system_sgpr_workgroup_id_x 1")
    e(".end_amdhsa_kernel")

def srd(sd, sp, nbytes):
    e(f"    s_mov_b32 s{sd}, s{sp}")
    e(f"    s_mov_b32 s{sd+1}, s{sp+1}")
    e(f"    s_mov_b32 s{sd+2}, {nbytes:#x}")
    e(f"    s_mov_b32 s{sd+3}, 0x00020000")

def vr(a, n=1):
    return f"v{a}" if n == 1 else f"v[{a}:{a+n-1}]"

def kload(sd, name):
    e(f"    s_load_dwordx2 s[{sd}:{sd+1}], s[0:1], {KA[name]}")

class RowGemv:
    def __init__(self, LPR, NSTEP, vbase):
        self.LPR, self.NSTEP = LPR, NSTEP
        self.RPS = 256 // LPR
        self.NC = LPR * 8
        self.vW = vbase
        self.vX = self.vW + NSTEP * 4
        self.vAcc = self.vX + NSTEP * 4
        self.vT = self.vAcc + 32
        self.vend = self.vT + 4
    def issue(self, sW, vWoff, stepbytes, ssoff):
        c("rowgemv: issue W loads")
        for it in range(self.NSTEP):
            if it == 0:
                e(f"    buffer_load_dwordx4 {vr(self.vW,4)}, v{vWoff}, s[{sW}:{sW+3}], 0 offen")
            else:
                e(f"    s_mov_b32 s{ssoff}, {it*stepbytes:#x}")
                e(f"    buffer_load_dwordx4 {vr(self.vW+4*it,4)}, v{vWoff}, s[{sW}:{sW+3}], s{ssoff} offen")
    def compute(self, XOFF, REDOFF, vtid):
        LPR, NSTEP, RPS, NC = self.LPR, self.NSTEP, self.RPS, self.NC
        t0, t1, t2, t3 = self.vT, self.vT+1, self.vT+2, self.vT+3
        sh = {8:3, 16:4}[LPR]
        c("rowgemv: read x from LDS")
        e(f"    v_lshrrev_b32 v{t0}, {sh}, v{vtid}")
        e(f"    v_lshlrev_b32 v{t1}, 4, v{t0}")
        for it in range(NSTEP):
            e(f"    ds_read_b128 {vr(self.vX+4*it,4)}, v{t1} offset:{XOFF + it*RPS*16}")
        for j in range(32):
            e(f"    v_mov_b32 v{self.vAcc+j}, 0")
        e("    s_waitcnt lgkmcnt(0)")
        for it in range(NSTEP):
            e(f"    s_waitcnt vmcnt({NSTEP-1-it})")
            for j in range(4):
                w = self.vW + 4*it + j
                e(f"    v_lshlrev_b32 v{t2}, 16, v{w}")
                e(f"    v_and_b32 v{t3}, 0xffff0000, v{w}")
                for b in range(4):
                    e(f"    v_fmac_f32 v{self.vAcc+8*b+2*j}, v{self.vX+4*it+b}, v{t2}")
                    e(f"    v_fmac_f32 v{self.vAcc+8*b+2*j+1}, v{self.vX+4*it+b}, v{t3}")
        c("rowgemv: cross-row-group reduction through LDS")
        e(f"    v_and_b32 v{t1}, {LPR-1}, v{vtid}")
        e(f"    v_lshlrev_b32 v{t1}, 5, v{t1}")
        e(f"    v_mul_u32_u24 v{t2}, {16*NC}, v{t0}")
        e(f"    v_add_u32 v{t1}, v{t1}, v{t2}")
        for b in range(4):
            e(f"    ds_write_b128 v{t1}, {vr(self.vAcc+8*b,4)} offset:{REDOFF + b*NC*4}")
            e(f"    ds_write_b128 v{t1}, {vr(self.vAcc+8*b+4,4)} offset:{REDOFF + b*NC*4 + 16}")
        e("    s_waitcnt lgkmcnt(0)")
        e("    s_barrier")
        e(f"    v_lshlrev_b32 v{t1}, 2, v{vtid}")
        nout = (4*NC)//256
        for o in range(nout):
            for g in range(RPS):
                e(f"    ds_read_b32 v{self.vX+o*RPS+g}, v{t1} offset:{REDOFF + o*1024 + g*16*NC}")
        e("    s_waitcnt lgkmcnt(0)")
        for o in range(nout):
            dst = t2 + o
            e(f"    v_add_f32 v{dst}, v{self.vX+o*RPS}, v{self.vX+o*RPS+1}")
            for g in range(2, RPS):
                e(f"    v_add_f32 v{dst}, v{dst}, v{self.vX+o*RPS+g}")

def gen_k1():
    name = "k1_qproj_kernel"
    kstart(name)
    e("    s_cmp_ge_u32 s2, 128")
    e("    s_cbranch_scc1 K1_END")
    kload(4, "A_x"); kload(6, "A_wq"); kload(8, "B_x"); kload(10, "B_wq"); kload(12, "ws")
    e("    s_waitcnt lgkmcnt(0)")
    e("    s_lshr_b32 s3, s2, 6")
    e("    s_cmp_eq_u32 s3, 0")
    e("    s_cselect_b32 s4, s4, s8")
    e("    s_cselect_b32 s5, s5, s9")
    e("    s_cselect_b32 s6, s6, s10")
    e("    s_cselect_b32 s7, s7, s11")
    srd(16, 4, 4096)
    srd(20, 6, 4194304)
    srd(24, 12, WS_SIZE)
    e("    s_and_b32 s14, s2, 63")
    g = RowGemv(8, 16, 16)
    XOFF, REDOFF = 0, 8192
    e("    v_lshrrev_b32 v1, 3, v0")
    e("    v_lshlrev_b32 v1, 13, v1")
    e("    v_and_b32 v2, 7, v0")
    e("    v_lshlrev_b32 v2, 4, v2")
    e("    v_add_u32 v1, v1, v2")
    e("    s_lshl_b32 s15, s14, 7")
    e("    v_add_u32 v1, s15, v1")
    g.issue(20, 1, 32*8192, 15)
    c("stage x: thread t -> rows m=2t,2t+1")
    e("    v_lshlrev_b32 v2, 2, v0")
    for b in range(4):
        e(f"    buffer_load_dword v{4+b}, v2, s[16:19], 0 offen offset:{b*1024}")
    e("    s_waitcnt vmcnt(0)")
    for b in range(4):
        e(f"    v_lshlrev_b32 v{8+b}, 16, v{4+b}")
        e(f"    v_and_b32 v{12+b}, 0xffff0000, v{4+b}")
    e("    v_lshlrev_b32 v2, 5, v0")
    e(f"    ds_write_b128 v2, v[8:11] offset:{XOFF}")
    e(f"    ds_write_b128 v2, v[12:15] offset:{XOFF+16}")
    e("    s_waitcnt lgkmcnt(0)")
    e("    s_barrier")
    g.compute(XOFF, REDOFF, 0)
    res = g.vT + 2
    c("store bf16: q[mat][b][slice*64+col], o = t: b = t>>6, col = t&63")
    e(f"    v_cvt_pk_bf16_f32 v{res}, v{res}, v{res}")
    e("    v_lshrrev_b32 v1, 6, v0")
    e("    v_lshlrev_b32 v1, 13, v1")
    e("    v_and_b32 v2, 63, v0")
    e("    v_lshlrev_b32 v2, 1, v2")
    e("    v_add_u32 v1, v1, v2")
    e("    s_lshl_b32 s15, s14, 7")
    e("    s_lshl_b32 s16, s3, 15")
    e("    s_add_u32 s15, s15, s16")
    e(f"    s_add_u32 s15, s15, {WS_QA}")
    e(f"    buffer_store_short v{res}, v1, s[24:27], s15 offen")
    e("K1_END:")
    kend(name, g.vend)
    return name

def gen_k2():
    name = "k2_qabs_kernel"
    kstart(name)
    e("    s_cmp_ge_u32 s2, 128")
    e("    s_cbranch_scc1 K2_END")
    kload(4, "B_wuk"); kload(6, "ws")
    e("    s_waitcnt lgkmcnt(0)")
    srd(8, 4, 4194304)
    srd(12, 6, WS_SIZE)
    e("    s_lshr_b32 s16, s2, 2")
    e("    s_and_b32 s17, s2, 3")
    e("    v_lshrrev_b32 v1, 6, v0")
    e("    v_and_b32 v2, 63, v0")
    e("    v_and_b32 v3, 15, v2")
    e("    v_lshrrev_b32 v4, 4, v2")
    c("A operand offsets: c = 128cq + 32w + 16T + l15 ; byte = c*8192 + h*256 + kk*64 + g*16")
    e("    v_lshlrev_b32 v5, 5, v1")
    e("    v_add_u32 v5, v5, v3")
    e("    v_lshlrev_b32 v5, 13, v5")
    e("    v_lshlrev_b32 v6, 4, v4")
    e("    v_add_u32 v5, v5, v6")
    e("    s_lshl_b32 s18, s17, 20")
    e("    s_lshl_b32 s19, s16, 8")
    e("    s_add_u32 s18, s18, s19")
    e("    s_add_u32 s19, s18, 0x20000")
    for T in range(2):
        for kk in range(4):
            e(f"    buffer_load_dwordx4 {vr(16+16*T+4*kk,4)}, v5, s[8:11], s{18+T} offen offset:{kk*64}")
    c("B operand: qB[b=l&3][h*128 + 32kk + 8g]")
    e("    v_and_b32 v7, 3, v2")
    e("    v_lshlrev_b32 v7, 13, v7")
    e("    v_add_u32 v7, v7, v6")
    e("    s_lshl_b32 s20, s16, 8")
    e(f"    s_add_u32 s20, s20, {WS_QB}")
    for kk in range(4):
        e(f"    buffer_load_dwordx4 {vr(48+4*kk,4)}, v7, s[12:15], s20 offen offset:{kk*64}")
    e("    s_waitcnt vmcnt(0)")
    for T in range(2):
        for kk in range(4):
            cc = "0" if kk == 0 else vr(64+4*T,4)
            e(f"    v_mfma_f32_16x16x32_bf16 {vr(64+4*T,4)}, {vr(16+16*T+4*kk,4)}, {vr(48+4*kk,4)}, {cc}")
    e("    s_nop 15")
    e(f"    s_mov_b32 s21, {f32hex(SCALE_LOG2E)}")
    for T in range(2):
        for r in range(4):
            e(f"    v_mul_f32 v{64+4*T+r}, s21, v{64+4*T+r}")
        e(f"    v_cvt_pk_bf16_f32 v{72+2*T}, v{64+4*T}, v{65+4*T}")
        e(f"    v_cvt_pk_bf16_f32 v{73+2*T}, v{66+4*T}, v{67+4*T}")
    c("store: lanes l15<4: qabs[b=l15][h][c0+16T+4g .. +3]")
    e("    v_lshlrev_b32 v8, 15, v3")
    e("    v_lshlrev_b32 v9, 6, v1")
    e("    v_add_u32 v8, v8, v9")
    e("    v_lshlrev_b32 v9, 3, v4")
    e("    v_add_u32 v8, v8, v9")
    e("    s_lshl_b32 s22, s16, 10")
    e("    s_lshl_b32 s23, s17, 8")
    e("    s_add_u32 s22, s22, s23")
    e(f"    s_add_u32 s22, s22, {WS_QABS}")
    e("    v_cmp_gt_u32 vcc, 4, v3")
    e("    s_and_saveexec_b64 s[24:25], vcc")
    e("    buffer_store_dwordx2 v[72:73], v8, s[12:15], s22 offen")
    e("    buffer_store_dwordx2 v[74:75], v8, s[12:15], s22 offen offset:32")
    e("K2_END:")
    kend(name, 80)
    return name

def gen_k3():
    name = "k3_attn_kernel"
    kstart(name)
    e("    s_cmp_ge_u32 s2, 256")
    e("    s_cbranch_scc1 K3_END")
    e("    s_cmp_ge_u32 s2, 128")
    e("    s_cbranch_scc1 K3_A")
    kload(4, "B_ckv"); kload(6, "ws")
    e("    v_lshrrev_b32 v4, 6, v0")
    e("    v_and_b32 v1, 63, v0")
    e("    v_readfirstlane_b32 s18, v4")
    e("    s_waitcnt lgkmcnt(0)")
    srd(8, 4, 33554432)
    srd(12, 6, WS_SIZE)
    e("    s_lshr_b32 s16, s2, 5")
    e("    s_and_b32 s17, s2, 31")
    e("    v_and_b32 v2, 31, v1")
    e("    v_lshrrev_b32 v3, 5, v1")
    vDma, vRdA, vRdT, vEx, vm, vl, val = 8, 12, 20, 28, 29, 30, 31
    vQ, vS, vP, vT, vAcc = 32, 64, 96, 104, 176
    c("Q operand loads: qabs[b][head=l31][128w + 16kk + 8hf ..]")
    e("    v_lshlrev_b32 v4, 10, v2")
    e("    v_lshlrev_b32 v5, 4, v3")
    e("    v_add_u32 v4, v4, v5")
    e("    s_lshl_b32 s20, s16, 15")
    e("    s_lshl_b32 s21, s18, 8")
    e("    s_add_u32 s20, s20, s21")
    e(f"    s_add_u32 s20, s20, {WS_QABS}")
    for kk in range(8):
        e(f"    buffer_load_dwordx4 {vr(vQ+4*kk,4)}, v4, s[12:15], s20 offen offset:{kk*32}")
    c("DMA voffsets: rr*1024 + ((p ^ (rr<<2) ^ u)*16)")
    e("    v_lshrrev_b32 v4, 4, v1")
    e("    v_and_b32 v5, 15, v1")
    e("    v_lshlrev_b32 v6, 2, v4")
    e("    v_xor_b32 v5, v5, v6")
    e("    v_lshlrev_b32 v6, 10, v4")
    for u in range(4):
        e(f"    v_xor_b32 v7, {u}, v5")
        e(f"    v_lshlrev_b32 v7, 4, v7")
        e(f"    v_add_u32 v{vDma+u}, v6, v7")
    c("global base soffset s19 ; LDS wave base s22")
    e("    s_lshl_b32 s19, s16, 23")
    e("    s_lshl_b32 s21, s17, 18")
    e("    s_add_u32 s19, s19, s21")
    e("    s_lshl_b32 s21, s18, 8")
    e("    s_add_u32 s19, s19, s21")
    e("    s_lshl_b32 s22, s18, 15")
    def dma_tile(t):
        st = t & 3
        for i in range(8):
            e(f"    s_add_u32 s23, s22, {st*8192 + i*1024}")
            e(f"    s_mov_b32 m0, s23")
            e(f"    s_add_u32 s24, s19, {t*32768 + i*4096}")
            e(f"    buffer_load_dwordx4 v{vDma+(i&3)}, s[8:11], s24 offen lds")
    for t in range(4):
        dma_tile(t)
    c("GEMM1 read addresses: w*32768 + r*256 + ((hf ^ f(r))<<4), f(r)=((r&3)<<2)|((r>>2)&3)")
    e("    v_and_b32 v4, 3, v2")
    e("    v_lshlrev_b32 v4, 2, v4")
    e("    v_bfe_u32 v5, v2, 2, 2")
    e("    v_or_b32 v4, v4, v5")
    e("    v_xor_b32 v4, v4, v3")
    e("    v_lshlrev_b32 v4, 4, v4")
    e("    v_lshlrev_b32 v5, 8, v2")
    e("    v_add_u32 v4, v4, v5")
    e("    v_add_u32 v4, s22, v4")
    for kk in range(8):
        e(f"    v_xor_b32 v{vRdA+kk}, {kk<<5}, v4")
    c("tr read addresses")
    e("    v_and_b32 v4, 15, v1")
    e("    v_lshrrev_b32 v5, 2, v4")
    e("    v_bfe_u32 v6, v1, 4, 1")
    e("    v_lshlrev_b32 v6, 1, v6")
    e("    v_bfe_u32 v7, v4, 1, 1")
    e("    v_add_u32 v6, v6, v7")
    e("    v_lshlrev_b32 v7, 2, v5")
    e("    v_or_b32 v7, v7, v3")
    e("    v_xor_b32 v6, v6, v7")
    e("    v_lshlrev_b32 v6, 4, v6")
    e("    v_lshlrev_b32 v7, 2, v3")
    e("    v_add_u32 v7, v7, v5")
    e("    v_lshlrev_b32 v7, 8, v7")
    e("    v_add_u32 v6, v6, v7")
    e("    v_and_b32 v7, 1, v4")
    e("    v_lshlrev_b32 v7, 3, v7")
    e("    v_add_u32 v6, v6, v7")
    e("    v_add_u32 v6, s22, v6")
    for mt in range(4):
        for sec in range(2):
            e(f"    v_xor_b32 v{vRdT+2*mt+sec}, {(mt<<6)^(sec<<5)}, v6")
            if sec:
                e(f"    v_add_u32 v{vRdT+2*mt+sec}, 2048, v{vRdT+2*mt+sec}")
    e(f"    v_lshlrev_b32 v{vEx}, 4, v1")
    e(f"    v_add_u32 v{vEx}, 131072, v{vEx}")
    e("    s_lshl_b32 s25, s18, 12")
    e(f"    v_add_u32 v4, s25, v{vEx}")
    e(f"    v_mov_b32 v{vm}, 0xff7fffff")
    e(f"    v_mov_b32 v{vl}, 0")
    for j in range(64):
        e(f"    v_mov_b32 v{vAcc+j}, 0")
    EXOFF = 0
    for t in range(8):
        st = t & 3
        later = 8 * min(3, 7 - t)
        c(f"==== B tile {t}")
        e(f"    s_waitcnt vmcnt({later})")
        for kk in range(8):
            e(f"    ds_read_b128 {vr(vT+4*kk,4)}, v{vRdA+kk} offset:{st*8192}")
        e("    s_waitcnt lgkmcnt(0)")
        for kk in range(8):
            cc = "0" if kk == 0 else vr(vS,16)
            e(f"    v_mfma_f32_32x32x16_bf16 {vr(vS,16)}, {vr(vT+4*kk,4)}, {vr(vQ+4*kk,4)}, {cc}")
        e("    s_nop 15")
        ex = EXOFF + (t & 1) * 16384
        for q in range(4):
            e(f"    ds_write_b128 v4, {vr(vS+4*q,4)} offset:{ex + q*1024}")
        e("    s_waitcnt lgkmcnt(0)")
        e("    s_barrier")
        for w2 in range(4):
            for q in range(4):
                e(f"    ds_read_b128 {vr(vT+16*w2+4*q,4)}, v{vEx} offset:{ex + w2*4096 + q*1024}")
        e("    s_waitcnt lgkmcnt(0)")
        for r in range(16):
            e(f"    v_add_f32 v{vS+r}, v{vT+r}, v{vT+16+r}")
            e(f"    v_add_f32 v{vS+r}, v{vS+r}, v{vT+32+r}")
            e(f"    v_add_f32 v{vS+r}, v{vS+r}, v{vT+48+r}")
        c("softmax (online)")
        e(f"    v_max3_f32 v5, v{vS}, v{vS+1}, v{vS+2}")
        for r in range(3, 15, 2):
            e(f"    v_max3_f32 v5, v5, v{vS+r}, v{vS+r+1}")
        e(f"    v_max_f32 v5, v5, v{vS+15}")
        e("    v_mov_b32 v6, v5")
        e("    s_nop 1")
        e("    v_permlane32_swap_b32 v5, v6")
        e("    s_nop 1")
        e("    v_max_f32 v5, v5, v6")
        e(f"    v_max_f32 v5, v5, v{vm}")
        e(f"    v_sub_f32 v6, v{vm}, v5")
        e(f"    v_exp_f32 v{val}, v6")
        e(f"    v_mov_b32 v{vm}, v5")
        for r in range(16):
            e(f"    v_sub_f32 v{vS+r}, v{vS+r}, v5")
            e(f"    v_exp_f32 v{vS+r}, v{vS+r}")
        e(f"    v_mul_f32 v{vl}, v{vl}, v{val}")
        for r in range(16):
            e(f"    v_add_f32 v{vl}, v{vl}, v{vS+r}")
        for j in range(8):
            e(f"    v_cvt_pk_bf16_f32 v{vP+j}, v{vS+2*j}, v{vS+2*j+1}")
        for j in range(64):
            e(f"    v_mul_f32 v{vAcc+j}, v{vAcc+j}, v{val}")
        c("GEMM2: transposed reads")
        for mt in range(4):
            for m in range(2):
                for sec in range(2):
                    e(f"    ds_read_b64_tr_b16 {vr(vT+8*mt+4*m+2*sec,2)}, v{vRdT+2*mt+sec} offset:{st*8192 + m*4096}")
        e("    s_waitcnt lgkmcnt(0)")
        if t + 4 < 8:
            dma_tile(t + 4)
        for mt in range(4):
            for m in range(2):
                e(f"    v_mfma_f32_32x32x16_bf16 {vr(vAcc+16*mt,16)}, {vr(vT+8*mt+4*m,4)}, {vr(vP+4*m,4)}, {vr(vAcc+16*mt,16)}")
    c("==== B epilogue")
    e("    s_nop 15")
    e(f"    v_mov_b32 v6, v{vl}")
    e("    s_nop 1")
    e(f"    v_permlane32_swap_b32 v{vl}, v6")
    e("    s_nop 1")
    e(f"    v_add_f32 v{vl}, v{vl}, v6")
    c("stats: Bstat[b][split][0/1][h] by wave 0 lanes<32")
    e("    v_lshlrev_b32 v5, 2, v2")
    e("    s_lshl_b32 s23, s2, 8")
    e(f"    s_add_u32 s23, s23, {WS_BSTAT}")
    e("    v_cmp_gt_u32 vcc, 32, v0")
    e("    s_and_saveexec_b64 s[26:27], vcc")
    e(f"    buffer_store_dword v{vm}, v5, s[12:15], s23 offen")
    e(f"    buffer_store_dword v{vl}, v5, s[12:15], s23 offen offset:128")
    e("    s_mov_b64 exec, s[26:27]")
    c("O^T -> Bpart[b][split][h][c] bf16 ; c = 128w + 32mt + 8q + 4hf + (0..3)")
    e("    v_lshlrev_b32 v5, 10, v2")
    e("    v_lshlrev_b32 v6, 3, v3")
    e("    v_add_u32 v5, v5, v6")
    e("    s_lshl_b32 s23, s2, 15")
    e("    s_lshl_b32 s24, s18, 8")
    e("    s_add_u32 s23, s23, s24")
    e(f"    s_add_u32 s23, s23, {WS_BPART}")
    for mt in range(4):
        for q in range(4):
            a = vAcc + 16*mt + 4*q
            e(f"    v_cvt_pk_bf16_f32 v{vT+2*(4*mt+q)}, v{a}, v{a+1}")
            e(f"    v_cvt_pk_bf16_f32 v{vT+2*(4*mt+q)+1}, v{a+2}, v{a+3}")
    for mt in range(4):
        for q in range(4):
            e(f"    buffer_store_dwordx2 {vr(vT+2*(4*mt+q),2)}, v5, s[12:15], s23 offen offset:{(32*mt+8*q)*2}")
    e("    s_endpgm")

    e("K3_A:")
    kload(4, "A_k"); kload(6, "A_v"); kload(28, "ws")
    e("    v_lshrrev_b32 v4, 6, v0")
    e("    v_and_b32 v1, 63, v0")
    e("    v_readfirstlane_b32 s18, v4")
    e("    s_waitcnt lgkmcnt(0)")
    srd(8, 4, 67108864)
    srd(12, 6, 67108864)
    srd(24, 28, WS_SIZE)
    e("    s_sub_u32 s16, s2, 128")
    e("    s_lshr_b32 s17, s16, 2")
    e("    s_and_b32 s19, s16, 3")
    c("s20 = byte base of this wave's keys: ((b*8+kvh)*8192 + 6144 + 512sx + 128w)*256")
    e("    s_lshl_b32 s20, s17, 21")
    e("    s_lshl_b32 s21, s19, 17")
    e("    s_add_u32 s20, s20, s21")
    e("    s_lshl_b32 s21, s18, 15")
    e("    s_add_u32 s20, s20, s21")
    e(f"    s_add_u32 s20, s20, {6144*256}")
    e("    v_and_b32 v2, 15, v1")
    e("    v_lshrrev_b32 v3, 4, v1")
    vQ, vP, vK, vS, vAcc = 16, 32, 64, 192, 224
    c("Q operand: qA[b][(kvh*4 + (l&3))*128 + 32kk + 8g]")
    e("    v_and_b32 v4, 3, v1")
    e("    v_lshlrev_b32 v4, 8, v4")
    e("    v_lshlrev_b32 v5, 4, v3")
    e("    v_add_u32 v4, v4, v5")
    c("b*8192 + kvh*1024 = (b*8+kvh)*1024")
    e("    s_lshl_b32 s21, s17, 10")
    e(f"    s_add_u32 s21, s21, {WS_QA}")
    for kk in range(4):
        e(f"    buffer_load_dwordx4 {vr(vQ+4*kk,4)}, v4, s[24:27], s21 offen offset:{kk*64}")
    c("K loads: key = 16T + l15 ; byte = key*256 + kk*64 + g*16")
    e("    v_lshlrev_b32 v6, 8, v2")
    e("    v_add_u32 v6, v6, v5")
    for T in range(8):
        e(f"    s_add_u32 s22, s20, {T*4096}")
        for kk in range(4):
            e(f"    buffer_load_dwordx4 {vr(vK+16*T+4*kk,4)}, v6, s[8:11], s22 offen offset:{kk*64}")
    c("V DMA voffsets: rr*256 + ((p ^ ((4u+rr)<<1))<<4)")
    for u in range(2):
        e(f"    v_add_u32 v7, {4*u}, v3")
        e(f"    v_lshlrev_b32 v7, 1, v7")
        e(f"    v_xor_b32 v7, v7, v2")
        e(f"    v_lshlrev_b32 v7, 4, v7")
        e(f"    v_lshlrev_b32 v8, 8, v3")
        e(f"    v_add_u32 v{10+u}, v7, v8")
    e("    s_lshl_b32 s23, s18, 15")
    def vdma(i):
        e(f"    s_add_u32 s22, s23, {i*1024}")
        e(f"    s_mov_b32 m0, s22")
        e(f"    s_add_u32 s22, s20, {i*1024}")
        e(f"    buffer_load_dwordx4 v{10+(i&1)}, s[12:15], s22 offen lds")
    for i in range(24):
        vdma(i)
    c("S^T tiles")
    for T in range(8):
        e(f"    s_waitcnt vmcnt({24 + 4*(7-T)})")
        for kk in range(4):
            cc = "0" if kk == 0 else vr(vS+4*T,4)
            e(f"    v_mfma_f32_16x16x32_bf16 {vr(vS+4*T,4)}, {vr(vK+16*T+4*kk,4)}, {vr(vQ+4*kk,4)}, {cc}")
    for i in range(24, 32):
        vdma(i)
    e("    s_nop 7")
    c("scale + max")
    e(f"    s_mov_b32 s22, {f32hex(SCALE_LOG2E)}")
    for r in range(32):
        e(f"    v_mul_f32 v{vS+r}, s22, v{vS+r}")
    e(f"    v_max3_f32 v5, v{vS}, v{vS+1}, v{vS+2}")
    for r in range(3, 31, 2):
        e(f"    v_max3_f32 v5, v5, v{vS+r}, v{vS+r+1}")
    e(f"    v_max_f32 v5, v5, v{vS+31}")
    e("    v_mov_b32 v6, v5")
    e("    s_nop 1")
    e("    v_permlane32_swap_b32 v5, v6")
    e("    s_nop 1")
    e("    v_max_f32 v5, v5, v6")
    e("    ds_swizzle_b32 v6, v5 offset:0x401F")
    e("    s_waitcnt lgkmcnt(0)")
    e("    v_max_f32 v5, v5, v6")
    for r in range(32):
        e(f"    v_sub_f32 v{vS+r}, v{vS+r}, v5")
        e(f"    v_exp_f32 v{vS+r}, v{vS+r}")
    e(f"    v_add_f32 v7, v{vS}, v{vS+1}")
    for r in range(2, 32):
        e(f"    v_add_f32 v7, v7, v{vS+r}")
    e("    v_mov_b32 v6, v7")
    e("    s_nop 1")
    e("    v_permlane32_swap_b32 v7, v6")
    e("    s_nop 1")
    e("    v_add_f32 v7, v7, v6")
    e("    ds_swizzle_b32 v6, v7 offset:0x401F")
    e("    s_waitcnt lgkmcnt(0)")
    e("    v_add_f32 v7, v7, v6")
    for j in range(16):
        e(f"    v_cvt_pk_bf16_f32 v{vP+j}, v{vS+2*j}, v{vS+2*j+1}")
    c("tr read base address: r = 4g + (i>>2); chunk0 = (i>>1)&1; f = (r&7)<<1")
    e("    v_lshrrev_b32 v8, 2, v2")
    e("    v_lshlrev_b32 v9, 2, v3")
    e("    v_add_u32 v8, v8, v9")
    e("    v_and_b32 v9, 7, v8")
    e("    v_lshlrev_b32 v9, 1, v9")
    e("    v_bfe_u32 v12, v2, 1, 1")
    e("    v_xor_b32 v9, v9, v12")
    e("    v_lshlrev_b32 v9, 4, v9")
    e("    v_lshlrev_b32 v8, 8, v8")
    e("    v_add_u32 v8, v8, v9")
    e("    v_and_b32 v9, 1, v2")
    e("    v_lshlrev_b32 v9, 3, v9")
    e("    v_add_u32 v8, v8, v9")
    e("    v_add_u32 v8, s23, v8")
    for dt in range(8):
        e(f"    v_xor_b32 v{48+dt}, {dt<<5}, v8")
    for j in range(32):
        e(f"    v_mov_b32 v{vAcc+j}, 0")
    e("    s_waitcnt vmcnt(0)")
    vOp = vK
    for KG in range(4):
        for dt in range(8):
            for sec in range(2):
                e(f"    ds_read_b64_tr_b16 {vr(vOp+32*(KG&1)+4*dt+2*sec,2)}, v{48+dt} offset:{KG*8192+sec*4096}")
        e("    s_waitcnt lgkmcnt(0)")
        for dt in range(8):
            e(f"    v_mfma_f32_16x16x32_bf16 {vr(vAcc+4*dt,4)}, {vr(vOp+32*(KG&1)+4*dt,4)}, {vr(vP+4*KG,4)}, {vr(vAcc+4*dt,4)}")
    e("    s_nop 7")
    c("store partial: Apart[b][kvh][split=4sx+w][head][128] f32, lanes l15<4")
    e("    v_lshlrev_b32 v8, 9, v2")
    e("    v_lshlrev_b32 v9, 4, v3")
    e("    v_add_u32 v8, v8, v9")
    e("    s_lshl_b32 s21, s16, 2")
    e("    s_add_u32 s21, s21, s18")
    e("    s_lshl_b32 s22, s21, 11")
    e(f"    s_add_u32 s22, s22, {WS_APART}")
    e("    v_lshlrev_b32 v9, 2, v2")
    e("    s_lshl_b32 s21, s21, 5")
    e(f"    s_add_u32 s21, s21, {WS_ASTAT}")
    e("    v_cmp_gt_u32 vcc, 4, v2")
    e("    s_and_saveexec_b64 s[30:31], vcc")
    for dt in range(8):
        e(f"    buffer_store_dwordx4 {vr(vAcc+4*dt,4)}, v8, s[24:27], s22 offen offset:{dt*64}")
    e("    buffer_store_dword v5, v9, s[24:27], s21 offen")
    e("    buffer_store_dword v7, v9, s[24:27], s21 offen offset:16")
    e("K3_END:")
    kend(name, 256)
    return name

def gen_k4():
    name = "k4_comb_kernel"
    kstart(name)
    e("    s_cmp_ge_u32 s2, 320")
    e("    s_cbranch_scc1 K4_END")
    e("    s_cmp_ge_u32 s2, 256")
    e("    s_cbranch_scc1 K4_A")
    kload(4, "B_wuv"); kload(6, "ws")
    e("    s_waitcnt lgkmcnt(0)")
    srd(8, 4, 4194304)
    srd(12, 6, WS_SIZE)
    e("    s_lshr_b32 s16, s2, 3")
    e("    s_and_b32 s17, s2, 7")
    g = RowGemv(16, 4, 64)
    XOFF, REDOFF = 0, 4096
    c("W offsets: (64j + lr)*8192 + h*256 + lc*16")
    e("    v_lshrrev_b32 v1, 4, v0")
    e("    v_lshlrev_b32 v1, 13, v1")
    e("    v_and_b32 v2, 15, v0")
    e("    v_lshlrev_b32 v2, 4, v2")
    e("    v_add_u32 v1, v1, v2")
    e("    s_lshl_b32 s18, s17, 19")
    e("    s_lshl_b32 s19, s16, 8")
    e("    s_add_u32 s18, s18, s19")
    e("    v_add_u32 v1, s18, v1")
    g.issue(8, 1, 16*8192, 18)
    c("stats for (b = wave, h): lane s = lane&31")
    e("    v_lshrrev_b32 v2, 6, v0")
    e("    v_and_b32 v3, 31, v0")
    e("    v_lshlrev_b32 v4, 5, v2")
    e("    v_add_u32 v4, v4, v3")
    e("    v_lshlrev_b32 v4, 8, v4")
    e("    s_lshl_b32 s18, s16, 2")
    e(f"    s_add_u32 s18, s18, {WS_BSTAT}")
    e("    buffer_load_dword v5, v4, s[12:15], s18 offen")
    e("    buffer_load_dword v6, v4, s[12:15], s18 offen offset:128")
    c("partial loads")
    e("    v_lshlrev_b32 v7, 20, v2")
    e("    v_and_b32 v8, 63, v0")
    e("    v_lshlrev_b32 v9, 1, v8")
    e("    v_add_u32 v7, v7, v9")
    e("    s_lshl_b32 s18, s16, 10")
    e("    s_lshl_b32 s19, s17, 7")
    e("    s_add_u32 s18, s18, s19")
    e(f"    s_add_u32 s18, s18, {WS_BPART}")
    for s in range(32):
        e(f"    buffer_load_ushort v{16+s}, v7, s[12:15], s18 offen")
        if s < 31:
            e(f"    s_add_u32 s18, s18, 32768")
    e("    s_waitcnt vmcnt(32)")
    e("    v_mov_b32 v10, v5")
    for off in (0x041F, 0x081F, 0x101F, 0x201F, 0x401F):
        e(f"    ds_swizzle_b32 v11, v10 offset:{off:#x}")
        e("    s_waitcnt lgkmcnt(0)")
        e("    v_max_f32 v10, v10, v11")
    e("    v_sub_f32 v5, v5, v10")
    e("    v_exp_f32 v5, v5")
    e("    v_mul_f32 v6, v6, v5")
    for off in (0x041F, 0x081F, 0x101F, 0x201F, 0x401F):
        e(f"    ds_swizzle_b32 v11, v6 offset:{off:#x}")
        e("    s_waitcnt lgkmcnt(0)")
        e("    v_add_f32 v6, v6, v11")
    e("    v_rcp_f32 v6, v6")
    e("    s_nop 0")
    e("    v_mul_f32 v5, v5, v6")
    e("    v_mov_b32 v12, 0")
    e("    s_waitcnt vmcnt(0)")
    for s in range(32):
        e(f"    v_readlane_b32 s20, v5, {s}")
        e(f"    v_lshlrev_b32 v{16+s}, 16, v{16+s}")
        e(f"    s_nop 0")
        e(f"    v_fmac_f32 v12, s20, v{16+s}")
    c("x[cl][b] -> LDS")
    e("    v_lshlrev_b32 v8, 4, v8")
    e("    v_lshlrev_b32 v9, 2, v2")
    e("    v_add_u32 v8, v8, v9")
    e(f"    ds_write_b32 v8, v12 offset:{XOFF}")
    e("    s_waitcnt lgkmcnt(0)")
    e("    s_barrier")
    g.compute(XOFF, REDOFF, 0)
    c("store ctxp[j][b][h*128+d]: o=t: b=t>>7, d=t&127 ; o=t+256: b+2")
    e("    v_lshrrev_b32 v1, 7, v0")
    e("    v_lshlrev_b32 v1, 14, v1")
    e("    v_and_b32 v2, 127, v0")
    e("    v_lshlrev_b32 v2, 2, v2")
    e("    v_add_u32 v1, v1, v2")
    e("    s_lshl_b32 s18, s17, 16")
    e("    s_lshl_b32 s19, s16, 9")
    e("    s_add_u32 s18, s18, s19")
    e(f"    s_add_u32 s18, s18, {WS_CTXP}")
    e(f"    buffer_store_dword v{g.vT+2}, v1, s[12:15], s18 offen")
    e(f"    buffer_store_dword v{g.vT+3}, v1, s[12:15], s18 offen offset:0")
    L[-1] = f"    s_add_u32 s18, s18, 32768"
    e(f"    buffer_store_dword v{g.vT+3}, v1, s[12:15], s18 offen")
    e("    s_endpgm")
    e("K4_A:")
    kload(6, "ws")
    e("    s_waitcnt lgkmcnt(0)")
    srd(12, 6, WS_SIZE)
    e("    s_sub_u32 s16, s2, 256")
    e("    s_lshl_b32 s16, s16, 8")
    e("    v_add_u32 v1, s16, v0")
    e("    v_lshrrev_b32 v2, 7, v1")
    e("    v_and_b32 v3, 127, v1")
    e("    v_lshrrev_b32 v4, 2, v2")
    e("    v_and_b32 v5, 3, v2")
    c("stat offset: ((b*8+kvh)*16 + s)*32 + hh*4")
    e("    v_lshlrev_b32 v6, 9, v4")
    e("    v_lshlrev_b32 v7, 2, v5")
    e("    v_add_u32 v6, v6, v7")
    e(f"    s_mov_b32 s18, {WS_ASTAT}")
    for s in range(16):
        e(f"    buffer_load_dword v{16+s}, v6, s[12:15], s18 offen offset:{s*32}")
        e(f"    buffer_load_dword v{32+s}, v6, s[12:15], s18 offen offset:{s*32+16}")
    c("partial offset: (((b*8+kvh)*16+s)*4 + hh)*512 + d*4")
    e("    v_lshlrev_b32 v8, 15, v4")
    e("    v_lshlrev_b32 v9, 9, v5")
    e("    v_add_u32 v8, v8, v9")
    e("    v_lshlrev_b32 v9, 2, v3")
    e("    v_add_u32 v8, v8, v9")
    e(f"    s_mov_b32 s18, {WS_APART}")
    for s in range(16):
        e(f"    buffer_load_dword v{48+s}, v8, s[12:15], s18 offen")
        if s < 15:
            e("    s_add_u32 s18, s18, 2048")
    e("    s_waitcnt vmcnt(16)")
    e("    v_max_f32 v10, v16, v17")
    for s in range(2, 16):
        e(f"    v_max_f32 v10, v10, v{16+s}")
    e("    v_mov_b32 v11, 0")
    for s in range(16):
        e(f"    v_sub_f32 v{16+s}, v{16+s}, v10")
        e(f"    v_exp_f32 v{16+s}, v{16+s}")
        e("    s_nop 0")
        e(f"    v_fmac_f32 v11, v{16+s}, v{32+s}")
    e("    v_rcp_f32 v11, v11")
    e("    v_mov_b32 v12, 0")
    e("    s_waitcnt vmcnt(0)")
    for s in range(16):
        e(f"    v_fmac_f32 v12, v{16+s}, v{48+s}")
    e("    v_mul_f32 v12, v12, v11")
    e("    v_lshlrev_b32 v1, 2, v1")
    e(f"    s_mov_b32 s18, {WS_OA}")
    e("    buffer_store_dword v12, v1, s[12:15], s18 offen")
    e("K4_END:")
    kend(name, g.vend)
    return name

def gen_k5():
    name = "k5_oproj_kernel"
    kstart(name)
    e("    s_cmp_ge_u32 s2, 128")
    e("    s_cbranch_scc1 K5_END")
    kload(4, "A_wo"); kload(6, "B_wo"); kload(8, "ws")
    e("    s_waitcnt lgkmcnt(0)")
    e("    s_lshr_b32 s3, s2, 6")
    e("    s_cmp_eq_u32 s3, 0")
    e("    s_cselect_b32 s4, s4, s6")
    e("    s_cselect_b32 s5, s5, s7")
    srd(12, 4, 4194304)
    srd(16, 8, WS_SIZE)
    e("    s_bfe_u32 s20, s2, 0x40002")
    e("    s_and_b32 s21, s2, 3")
    g = RowGemv(16, 16, 16)
    XOFF, REDOFF = 0, 4096
    e("    v_lshrrev_b32 v1, 4, v0")
    e("    v_lshlrev_b32 v1, 10, v1")
    e("    v_and_b32 v2, 15, v0")
    e("    v_lshlrev_b32 v2, 4, v2")
    e("    v_add_u32 v1, v1, v2")
    e("    s_lshl_b32 s22, s20, 18")
    e("    s_lshl_b32 s23, s21, 8")
    e("    s_add_u32 s22, s22, s23")
    e("    v_add_u32 v1, s22, v1")
    g.issue(12, 1, 16*1024, 22)
    c("stage x: row r = 256rc + t")
    e("    v_lshlrev_b32 v2, 2, v0")
    e("    s_lshl_b32 s22, s20, 10")
    e("    s_cmp_eq_u32 s3, 0")
    e("    s_cbranch_scc0 K5_XB")
    e(f"    s_add_u32 s22, s22, {WS_OA}")
    for b in range(4):
        e(f"    buffer_load_dword v{8+b}, v2, s[16:19], s22 offen")
        e(f"    s_add_u32 s22, s22, 16384")
    e("    s_waitcnt vmcnt(0)")
    e("    s_branch K5_XDONE")
    e("K5_XB:")
    e(f"    s_add_u32 s22, s22, {WS_CTXP}")
    vtmp = g.vX
    for j in range(8):
        for b in range(4):
            e(f"    buffer_load_dword v{vtmp+4*j+b}, v2, s[16:19], s22 offen")
            e(f"    s_add_u32 s22, s22, 16384")
    e("    s_waitcnt vmcnt(0)")
    for b in range(4):
        e(f"    v_add_f32 v{8+b}, v{vtmp+b}, v{vtmp+4+b}")
        for j in range(2, 8):
            e(f"    v_add_f32 v{8+b}, v{8+b}, v{vtmp+4*j+b}")
    e("K5_XDONE:")
    e("    v_lshlrev_b32 v2, 4, v0")
    e(f"    ds_write_b128 v2, v[8:11] offset:{XOFF}")
    e("    s_waitcnt lgkmcnt(0)")
    e("    s_barrier")
    g.compute(XOFF, REDOFF, 0)
    c("store outp[mat][rc][b][cs*128+col]")
    e("    v_lshrrev_b32 v1, 7, v0")
    e("    v_lshlrev_b32 v1, 11, v1")
    e("    v_and_b32 v2, 127, v0")
    e("    v_lshlrev_b32 v2, 2, v2")
    e("    v_add_u32 v1, v1, v2")
    e("    s_lshl_b32 s22, s3, 17")
    e("    s_lshl_b32 s23, s20, 13")
    e("    s_add_u32 s22, s22, s23")
    e("    s_lshl_b32 s23, s21, 9")
    e("    s_add_u32 s22, s22, s23")
    e(f"    s_add_u32 s22, s22, {WS_OUTP}")
    e(f"    buffer_store_dword v{g.vT+2}, v1, s[16:19], s22 offen")
    e(f"    s_add_u32 s22, s22, 4096")
    e(f"    buffer_store_dword v{g.vT+3}, v1, s[16:19], s22 offen")
    e("K5_END:")
    kend(name, g.vend)
    return name

def gen_k6():
    name = KNAME
    kstart(name)
    e("    s_cmp_ge_u32 s2, 16")
    e("    s_cbranch_scc1 K6_END")
    kload(4, "out"); kload(6, "ws")
    e("    s_waitcnt lgkmcnt(0)")
    srd(8, 4, 8192)
    srd(12, 6, WS_SIZE)
    e("    s_lshl_b32 s3, s2, 8")
    e("    v_add_u32 v1, s3, v0")
    e("    v_lshrrev_b32 v2, 10, v1")
    e("    v_bfe_u32 v3, v1, 9, 1")
    e("    v_and_b32 v4, 511, v1")
    e("    v_lshlrev_b32 v2, 11, v2")
    e("    v_lshlrev_b32 v3, 17, v3")
    e("    v_lshlrev_b32 v4, 2, v4")
    e("    v_add_u32 v2, v2, v3")
    e("    v_add_u32 v2, v2, v4")
    e(f"    s_mov_b32 s16, {WS_OUTP}")
    for rc in range(16):
        e(f"    buffer_load_dword v{8+rc}, v2, s[12:15], s16 offen")
        e(f"    s_add_u32 s16, s16, 8192")
    e("    s_waitcnt vmcnt(0)")
    e("    v_add_f32 v5, v8, v9")
    for rc in range(2, 16):
        e(f"    v_add_f32 v5, v5, v{8+rc}")
    e("    v_cvt_pk_bf16_f32 v5, v5, v5")
    e("    v_lshlrev_b32 v1, 1, v1")
    e("    buffer_store_short v5, v1, s[8:11], 0 offen")
    e("K6_END:")
    kend(name, 32)
    return name

import re
def fix_hazards(lines):
    res = []
    trans = ("v_exp_f32", "v_rcp_f32", "v_rsq_f32", "v_log_f32", "v_sqrt_f32")
    for i, ln in enumerate(lines):
        res.append(ln)
        t = ln.strip().split()
        if t and t[0] in trans:
            d = t[1].rstrip(",")
            nxt = lines[i+1].strip() if i+1 < len(lines) else ""
            if re.search(r"\b" + d + r"\b", nxt) and nxt.startswith("v_"):
                res.append("    s_nop 0")
    return res

def main():
    hdr = open("concat_heads__sliding_block_cached__compressed_kv_cla__decode.s.ref").read().split("\n")
    hdr = [l for l in hdr if l.startswith(";") and "@launch" not in l]
    launches = [
        ("k1_qproj_kernel", 128, 40960),
        ("k2_qabs_kernel", 128, 0),
        ("k3_attn_kernel", 256, 163840),
        ("k4_comb_kernel", 320, 36864),
        ("k5_oproj_kernel", 128, 36864),
        (KNAME, 16, 0),
    ]
    out = list(hdr)
    for n, gx, lds in launches:
        out.append(f"; @launch kernel={n} grid=({gx},1,1) block=(256,1,1) lds={lds}")
    out.append('.amdgcn_target "amdgcn-amd-amdhsa--gfx950"')
    gen_k1(); gen_k2(); gen_k3(); gen_k4(); gen_k5(); gen_k6()
    out += fix_hazards(L)
    dst = sys.argv[1] if len(sys.argv) > 1 else "concat_heads__sliding_block_cached__compressed_kv_cla__decode.s"
    open(dst, "w").write("\n".join(out) + "\n")

if __name__ == "__main__":
    main()
```

```python
import sys, struct

L = []
EXP = sys.argv[2] if len(sys.argv) > 2 else ''
def e(s=""):
    L.append(s)
def c(s):
    L.append("    ; " + s)

KNAME = "concat_heads__sliding_block_cached__compressed_kv_cla__decode_kernel"

KA = dict(A_x=0, A_k=8, A_v=16, A_wq=24, A_wo=32, B_x=40, B_ckv=48, B_wq=56, B_wuk=64, B_wuv=72, B_wo=80, out=88, dbg=96, ws=104)

WS_QA   = 0x000000
WS_QP   = 0x800000
WS_QABS = 0x010000
WS_BSTAT= 0x030000
WS_ASTAT= 0x038000
WS_OA   = 0x040000
WS_CTXP = 0x050000
WS_OUTP = 0x0D0000
WS_APART= 0x200000
WS_BPART= 0x400000
WS_SIZE = 0x10000000

SCALE_LOG2E = 0.08838834764831845 * 1.4426950408889634

def f32hex(x):
    return "0x%08x" % struct.unpack("<I", struct.pack("<f", x))[0]

def kstart(name):
    e(".text")
    e(f".globl {name}")
    e(".p2align 8")
    e(f".type {name},@function")
    e(f"{name}:")

def kend(name, vgpr, sgpr=96, accum=None):
    if accum is None:
        accum = (vgpr + 3) // 4 * 4
    e("    s_endpgm")
    e('.section .rodata,"a"')
    e(".p2align 6")
    e(f".amdhsa_kernel {name}")
    e(f"  .amdhsa_next_free_vgpr {vgpr}")
    e(f"  .amdhsa_next_free_sgpr {sgpr}")
    e(f"  .amdhsa_accum_offset {accum}")
    e("  .amdhsa_group_segment_fixed_size 0")
    e("  .amdhsa_kernarg_size 112")
    e("  .amdhsa_user_sgpr_count 2")
    e("  .amdhsa_user_sgpr_kernarg_segment_ptr 1")
    e("  .amdhsa_system_sgpr_workgroup_id_x 1")
    e(".end_amdhsa_kernel")

def srd(sd, sp, nbytes):
    e(f"    s_mov_b32 s{sd}, s{sp}")
    e(f"    s_mov_b32 s{sd+1}, s{sp+1}")
    e(f"    s_mov_b32 s{sd+2}, {nbytes:#x}")
    e(f"    s_mov_b32 s{sd+3}, 0x00020000")

def vr(a, n=1):
    return f"v{a}" if n == 1 else f"v[{a}:{a+n-1}]"

STAMP_N = [0]
def stamp(sreg):
    if "stamp" not in EXP: return
    n = STAMP_N[0]; STAMP_N[0] += 1
    e(f"    s_memtime s[{sreg}:{sreg+1}]")
    e("    s_waitcnt lgkmcnt(0)")
    e(f"    s_mov_b32 s{60+n}, s{sreg}")
def lstamp():
    if "lstamp" not in EXP: return
    n = STAMP_N[0]; STAMP_N[0] += 1
    e(f"    s_memtime s[56:57]")
    e("    s_waitcnt lgkmcnt(0)")
    e("    s_cmp_eq_u32 s26, 5")
    e(f"    s_cselect_b32 s{60+n}, s56, s{60+n}")
def stamp_flush(srdreg, vtmp):
    if "stamp" not in EXP: return
    n = STAMP_N[0]
    e(f"    s_lshl_b32 s58, s2, 6")
    e(f"    s_add_u32 s58, s58, 0x1000000")
    e(f"    v_mov_b32 v{vtmp+1}, 0")
    for i in range(n):
        e(f"    v_mov_b32 v{vtmp}, s{60+i}")
        e(f"    buffer_store_dword v{vtmp}, v{vtmp+1}, s[{srdreg}:{srdreg+3}], s58 offen offset:{4*i}")
    STAMP_N[0] = 0

def kload(sd, name):
    e(f"    s_load_dwordx2 s[{sd}:{sd+1}], s[0:1], {KA[name]}")

class RowGemv:
    def __init__(self, LPR, NSTEP, vbase):
        self.LPR, self.NSTEP = LPR, NSTEP
        self.RPS = 256 // LPR
        self.NC = LPR * 8
        self.vW = vbase
        self.vX = self.vW + NSTEP * 4
        self.vAcc = self.vX + NSTEP * 4
        self.vT = self.vAcc + 32
        self.vend = self.vT + 4
    def issue(self, sW, vWoff, stepbytes, ssoff):
        c("rowgemv: issue W loads")
        for it in range(self.NSTEP):
            if it == 0:
                e(f"    buffer_load_dwordx4 {vr(self.vW,4)}, v{vWoff}, s[{sW}:{sW+3}], 0 offen")
            else:
                e(f"    s_mov_b32 s{ssoff}, {it*stepbytes:#x}")
                e(f"    buffer_load_dwordx4 {vr(self.vW+4*it,4)}, v{vWoff}, s[{sW}:{sW+3}], s{ssoff} offen")
    def compute(self, XOFF, REDOFF, vtid):
        LPR, NSTEP, RPS, NC = self.LPR, self.NSTEP, self.RPS, self.NC
        t0, t1, t2, t3 = self.vT, self.vT+1, self.vT+2, self.vT+3
        sh = {8:3, 16:4}[LPR]
        c("rowgemv: read x from LDS")
        e(f"    v_lshrrev_b32 v{t0}, {sh}, v{vtid}")
        e(f"    v_lshlrev_b32 v{t1}, 4, v{t0}")
        for it in range(NSTEP):
            e(f"    ds_read_b128 {vr(self.vX+4*it,4)}, v{t1} offset:{XOFF + it*RPS*16}")
        for j in range(32):
            e(f"    v_mov_b32 v{self.vAcc+j}, 0")
        e("    s_waitcnt lgkmcnt(0)")
        for it in range(NSTEP):
            e(f"    s_waitcnt vmcnt({NSTEP-1-it})")
            for j in range(4):
                w = self.vW + 4*it + j
                e(f"    v_lshlrev_b32 v{t2}, 16, v{w}")
                e(f"    v_and_b32 v{t3}, 0xffff0000, v{w}")
                for b in range(4):
                    e(f"    v_fmac_f32 v{self.vAcc+8*b+2*j}, v{self.vX+4*it+b}, v{t2}")
                    e(f"    v_fmac_f32 v{self.vAcc+8*b+2*j+1}, v{self.vX+4*it+b}, v{t3}")
        c("rowgemv: cross-row-group reduction through LDS")
        e(f"    v_and_b32 v{t1}, {LPR-1}, v{vtid}")
        e(f"    v_lshlrev_b32 v{t1}, 5, v{t1}")
        e(f"    v_mul_u32_u24 v{t2}, {16*NC}, v{t0}")
        e(f"    v_add_u32 v{t1}, v{t1}, v{t2}")
        for b in range(4):
            e(f"    ds_write_b128 v{t1}, {vr(self.vAcc+8*b,4)} offset:{REDOFF + b*NC*4}")
            e(f"    ds_write_b128 v{t1}, {vr(self.vAcc+8*b+4,4)} offset:{REDOFF + b*NC*4 + 16}")
        e("    s_waitcnt lgkmcnt(0)")
        e("    s_barrier")
        e(f"    v_lshlrev_b32 v{t1}, 2, v{vtid}")
        nout = (4*NC)//256
        for o in range(nout):
            for g in range(RPS):
                e(f"    ds_read_b32 v{self.vX+o*RPS+g}, v{t1} offset:{REDOFF + o*1024 + g*16*NC}")
        e("    s_waitcnt lgkmcnt(0)")
        for o in range(nout):
            dst = t2 + o
            e(f"    v_add_f32 v{dst}, v{self.vX+o*RPS}, v{self.vX+o*RPS+1}")
            for g in range(2, RPS):
                e(f"    v_add_f32 v{dst}, v{dst}, v{self.vX+o*RPS+g}")

def gen_k1():
    name = "k1_qproj_kernel"
    kstart(name)
    XOFF = 32768
    e("    s_cmp_ge_u32 s2, 256")
    e("    s_cbranch_scc1 K1_END")
    kload(4, "A_x"); kload(6, "A_wq"); kload(8, "B_x"); kload(10, "B_wq"); kload(14, "ws")
    e("    v_lshrrev_b32 v4, 6, v0")
    e("    v_and_b32 v1, 63, v0")
    e("    v_readfirstlane_b32 s18, v4")
    e("    v_and_b32 v2, 15, v1")
    e("    v_lshrrev_b32 v3, 4, v1")
    e("    s_lshr_b32 s19, s2, 7")
    e("    s_bfe_u32 s16, s2, 0x50002")
    e("    s_and_b32 s17, s2, 3")
    e("    s_cmp_eq_u32 s19, 1")
    e("    s_waitcnt lgkmcnt(0)")
    e("    s_cselect_b32 s20, s10, s6")
    e("    s_cselect_b32 s21, s11, s7")
    e("    s_mov_b32 s22, 0x400000")
    e("    s_mov_b32 s23, 0x00020000")
    e("    s_cselect_b32 s24, s8, s4")
    e("    s_cselect_b32 s25, s9, s5")
    e("    s_mov_b32 s26, 4096")
    e("    s_mov_b32 s27, 0x00020000")
    srd(32, 14, WS_SIZE)
    c("W -> LDS: wave w rows [32w,32w+32) of the 128-row chunk; voffset(u) = rr*8192 + ((p ^ ((4u+rr)<<1))<<4)")
    for u in range(2):
        e(f"    v_add_u32 v7, {4*u}, v3")
        e(f"    v_lshlrev_b32 v7, 1, v7")
        e(f"    v_xor_b32 v7, v7, v2")
        e(f"    v_lshlrev_b32 v7, 4, v7")
        e(f"    v_lshl_add_u32 v{10+u}, v3, 13, v7")
    e("    s_lshl_b32 s36, s18, 13")
    e("    s_lshl_b32 s37, s18, 18")
    e("    s_lshl_b32 s38, s16, 8")
    e("    s_add_u32 s37, s37, s38")
    e("    s_lshl_b32 s38, s17, 20")
    e("    s_add_u32 s37, s37, s38")
    for i in range(8):
        e("    s_mov_b32 m0, s36")
        e("    s_add_u32 s36, s36, 1024")
        e(f"    buffer_load_dwordx4 v{10+(i&1)}, s[20:23], s37 offen lds")
        e("    s_add_u32 s37, s37, 32768")
    c("x operand straight from global: x[b=l&3][128kc + 32ks + 8g ..]")
    e("    v_and_b32 v4, 3, v1")
    e("    v_lshlrev_b32 v4, 10, v4")
    e("    v_lshl_add_u32 v4, v3, 4, v4")
    e("    s_lshl_b32 s36, s17, 8")
    for ks in range(4):
        e(f"    buffer_load_dwordx4 {vr(32+4*ks,4)}, v4, s[24:27], s36 offen offset:{ks*64}")
    c("tr read addresses (r = 8g + 4sec + (i>>2))")
    e("    v_lshrrev_b32 v8, 2, v2")
    e("    v_lshlrev_b32 v9, 1, v8")
    e("    v_lshl_add_u32 v8, v3, 3, v8")
    e("    v_bfe_u32 v12, v2, 1, 1")
    e("    v_xor_b32 v9, v9, v12")
    e("    s_lshl_b32 s36, s18, 2")
    e("    v_xor_b32 v9, s36, v9")
    e("    v_lshlrev_b32 v9, 4, v9")
    e("    v_lshl_add_u32 v8, v8, 8, v9")
    e("    v_and_b32 v9, 1, v2")
    e("    v_lshl_add_u32 v8, v9, 3, v8")
    e("    v_xor_b32 v9, 32, v8")
    e("    v_xor_b32 v5, 128, v8")
    e("    v_add_u32 v5, 1024, v5")
    e("    v_xor_b32 v6, 32, v5")
    e("    s_waitcnt vmcnt(0)")
    e("    s_barrier")
    for ks in range(4):
        e(f"    ds_read_b64_tr_b16 {vr(48+8*ks,2)}, v8 offset:{ks*8192}")
        e(f"    ds_read_b64_tr_b16 {vr(50+8*ks,2)}, v5 offset:{ks*8192}")
        e(f"    ds_read_b64_tr_b16 {vr(52+8*ks,2)}, v9 offset:{ks*8192}")
        e(f"    ds_read_b64_tr_b16 {vr(54+8*ks,2)}, v6 offset:{ks*8192}")
    e("    s_waitcnt lgkmcnt(0)")
    for ks in range(4):
        for tt in range(2):
            cc = "0" if ks == 0 else vr(24+4*tt,4)
            e(f"    v_mfma_f32_16x16x32_bf16 {vr(24+4*tt,4)}, {vr(48+8*ks+4*tt,4)}, {vr(32+4*ks,4)}, {cc}")
    c("store QP[kc][mat][b=l15][128h + 32w + 16tt + 4g ..] f32")
    e("    v_lshlrev_b32 v5, 14, v2")
    e("    v_lshl_add_u32 v5, v3, 4, v5")
    e("    s_lshl_b32 s36, s17, 17")
    e("    s_lshl_b32 s37, s19, 16")
    e("    s_add_u32 s36, s36, s37")
    e("    s_lshl_b32 s37, s16, 9")
    e("    s_add_u32 s36, s36, s37")
    e("    s_lshl_b32 s37, s18, 7")
    e("    s_add_u32 s36, s36, s37")
    e(f"    s_add_u32 s36, s36, {WS_QP}")
    e("    v_cmp_gt_u32 vcc, 4, v2")
    e("    s_and_saveexec_b64 s[38:39], vcc")
    e("    buffer_store_dwordx4 v[24:27], v5, s[32:35], s36 offen")
    e("    buffer_store_dwordx4 v[28:31], v5, s[32:35], s36 offen offset:64")
    e("K1_END:")
    kend(name, 80)
    return name

def gen_k2():
    name = "k2_qabs_kernel"
    kstart(name)
    e("    s_cmp_ge_u32 s2, 144")
    e("    s_cbranch_scc1 K2_END")
    k2stamp = "k2stamp" in EXP
    def st(n):
        if k2stamp:
            e("    s_memtime s[56:57]"); e("    s_waitcnt lgkmcnt(0)"); e(f"    s_mov_b32 s{60+n}, s56")
    st(0)
    kload(4, "B_wuk"); kload(6, "ws")
    e("    v_lshrrev_b32 v4, 6, v0")
    e("    v_and_b32 v1, 63, v0")
    e("    v_readfirstlane_b32 s18, v4")
    e("    v_and_b32 v2, 15, v1")
    e("    v_lshrrev_b32 v3, 4, v1")
    e("    s_lshr_b32 s16, s2, 2")
    e("    s_and_b32 s17, s2, 3")
    e("    s_waitcnt lgkmcnt(0)")
    srd(8, 4, 4194304)
    srd(12, 6, WS_SIZE)
    st(1)
    e("    s_cmp_ge_u32 s2, 128")
    e("    s_cbranch_scc1 K2_A")
    c("A operand loads: c = 128cq + 32w + 16T + l15 ; byte = c*8192 + h*256 + kk*64 + g*16")
    e("    v_lshlrev_b32 v5, 13, v2")
    e("    v_lshl_add_u32 v5, v3, 4, v5")
    e("    s_lshl_b32 s20, s17, 20")
    e("    s_lshl_b32 s21, s18, 18")
    e("    s_add_u32 s20, s20, s21")
    e("    s_lshl_b32 s21, s16, 8")
    e("    s_add_u32 s20, s20, s21")
    e("    s_add_u32 s21, s20, 0x20000")
    for T in range(2):
        for kk in range(4):
            e(f"    buffer_load_dwordx4 {vr(32+16*T+4*kk,4)}, v5, s[8:11], s{20+T} offen offset:{kk*64}")
    c("B operand: sum of the 4 K-chunk partials of q_B[b=l&3][128h + 32kk + 8g ..+7] -> bf16")
    e("    v_and_b32 v6, 3, v1")
    e("    v_lshlrev_b32 v6, 14, v6")
    e("    v_lshl_add_u32 v6, v3, 5, v6")
    e("    s_lshl_b32 s22, s16, 9")
    e(f"    s_add_u32 s22, s22, {WS_QP + 65536}")
    for kc in range(4):
        for kk in range(4):
            e(f"    buffer_load_dwordx4 {vr(64+32*kc+8*kk,4)}, v6, s[12:15], s22 offen offset:{kk*128}")
            e(f"    buffer_load_dwordx4 {vr(68+32*kc+8*kk,4)}, v6, s[12:15], s22 offen offset:{kk*128+16}")
        if kc < 3:
            e("    s_add_u32 s22, s22, 131072")
    st(2)
    e("    s_waitcnt vmcnt(0)")
    st(3)
    for j in range(0,32,2):
        e(f"    v_pk_add_f32 {vr(64+j,2)}, {vr(64+j,2)}, {vr(96+j,2)}")
        e(f"    v_pk_add_f32 {vr(128+j,2)}, {vr(128+j,2)}, {vr(160+j,2)}")
        e(f"    v_pk_add_f32 {vr(64+j,2)}, {vr(64+j,2)}, {vr(128+j,2)}")
        e(f"    v_cvt_pk_bf16_f32 v{96+j//2}, v{64+j}, v{65+j}")
    e("    s_nop 1")
    for T in range(2):
        for kk in range(4):
            cc = "0" if kk == 0 else vr(24+4*T,4)
            e(f"    v_mfma_f32_16x16x32_bf16 {vr(24+4*T,4)}, {vr(32+16*T+4*kk,4)}, {vr(96+4*kk,4)}, {cc}")
    e(f"    s_mov_b32 s23, {f32hex(SCALE_LOG2E)}")
    c("store in fragment layout: QF[b][w=cq][kk][lane=hf*32+h][8] ; c_local = 32w' + 16T + 4g + r : kk = 2w'+T, hf = g>>1, j = 4(g&1)+r")
    e("    v_lshlrev_b32 v5, 15, v2")
    e("    v_lshrrev_b32 v6, 1, v3")
    e("    v_lshl_add_u32 v5, v6, 9, v5")
    e("    v_and_b32 v6, 1, v3")
    e("    v_lshl_add_u32 v5, v6, 3, v5")
    e("    s_lshl_b32 s24, s17, 13")
    e("    s_lshl_b32 s25, s18, 11")
    e("    s_add_u32 s24, s24, s25")
    e("    s_lshl_b32 s25, s16, 4")
    e("    s_add_u32 s24, s24, s25")
    e(f"    s_add_u32 s24, s24, {WS_QABS}")
    for T in range(2):
        for r in range(4):
            e(f"    v_mul_f32 v{24+4*T+r}, s23, v{24+4*T+r}")
        e(f"    v_cvt_pk_bf16_f32 v{16+2*T}, v{24+4*T}, v{25+4*T}")
        e(f"    v_cvt_pk_bf16_f32 v{17+2*T}, v{26+4*T}, v{27+4*T}")
    e("    v_cmp_gt_u32 vcc, 4, v2")
    e("    s_and_saveexec_b64 s[26:27], vcc")
    e("    buffer_store_dwordx2 v[16:17], v5, s[12:15], s24 offen")
    e("    buffer_store_dwordx2 v[18:19], v5, s[12:15], s24 offen offset:1024")
    if k2stamp:
        st(4)
        e("    s_waitcnt vmcnt(0)")
        st(5)
        e("    s_mov_b64 exec, -1")
        e("    s_lshl_b32 s58, s2, 6")
        e("    s_add_u32 s58, s58, 0x1000000")
        e("    v_mov_b32 v7, 0")
        for i in range(6):
            e(f"    v_mov_b32 v6, s{60+i}")
            e(f"    buffer_store_dword v6, v7, s[12:15], s58 offen offset:{4*i}")
    e("    s_endpgm")
    e("K2_A:")
    c("finalize q_A: thread handles 4 consecutive outputs")
    e("    s_sub_u32 s16, s2, 128")
    e("    s_lshl_b32 s16, s16, 12")
    e("    v_lshl_add_u32 v5, v0, 4, s16")
    e(f"    s_mov_b32 s22, {WS_QP}")
    for kc in range(4):
        e(f"    buffer_load_dwordx4 {vr(16+4*kc,4)}, v5, s[12:15], s22 offen")
        if kc < 3:
            e("    s_add_u32 s22, s22, 131072")
    e("    s_waitcnt vmcnt(0)")
    for j in range(2):
        e(f"    v_pk_add_f32 {vr(16+2*j,2)}, {vr(16+2*j,2)}, {vr(20+2*j,2)}")
        e(f"    v_pk_add_f32 {vr(24+2*j,2)}, {vr(24+2*j,2)}, {vr(28+2*j,2)}")
        e(f"    v_pk_add_f32 {vr(16+2*j,2)}, {vr(16+2*j,2)}, {vr(24+2*j,2)}")
        e(f"    v_cvt_pk_bf16_f32 v{8+j}, v{16+2*j}, v{17+2*j}")
    e("    v_lshrrev_b32 v5, 1, v5")
    e(f"    s_mov_b32 s22, {WS_QA}")
    e("    buffer_store_dwordx2 v[8:9], v5, s[12:15], s22 offen")
    e("K2_END:")
    kend(name, 192)
    return name

def gen_k12():
    name = "k12_q_kernel"
    kstart(name)
    XOFF, QOFF = 131072, 135168
    kst = "k12st_" in EXP
    def st(n):
        if kst:
            e("    s_memtime s[56:57]"); e("    s_waitcnt lgkmcnt(0)"); e(f"    s_mov_b32 s{60+n}, s56")
    e("    s_cmp_ge_u32 s2, 160")
    e("    s_cbranch_scc1 K12_END")
    st(0)
    kload(4, "A_x"); kload(6, "A_wq"); kload(8, "B_x"); kload(10, "B_wq"); kload(12, "B_wuk"); kload(14, "ws")
    e("    v_lshrrev_b32 v4, 6, v0")
    e("    v_and_b32 v1, 63, v0")
    e("    v_readfirstlane_b32 s18, v4")
    e("    v_and_b32 v2, 15, v1")
    e("    v_lshrrev_b32 v3, 4, v1")
    e("    s_lshr_b32 s16, s2, 2")
    e("    s_and_b32 s17, s2, 3")
    e("    s_sub_u32 s19, s2, 128")
    e("    s_cmp_lt_u32 s2, 128")
    e("    s_cselect_b32 s16, s16, s19")
    e("    s_waitcnt lgkmcnt(0)")
    e("    s_cselect_b32 s20, s10, s6")
    e("    s_cselect_b32 s21, s11, s7")
    e("    s_mov_b32 s22, 0x400000")
    e("    s_mov_b32 s23, 0x00020000")
    e("    s_cselect_b32 s24, s8, s4")
    e("    s_cselect_b32 s25, s9, s5")
    e("    s_mov_b32 s26, 4096")
    e("    s_mov_b32 s27, 0x00020000")
    srd(28, 12, 4194304)
    srd(32, 14, WS_SIZE)
    st(1)
    c("x -> LDS (wave w loads x[b=w])")
    e("    v_lshlrev_b32 v4, 4, v1")
    e("    s_lshl_b32 s36, s18, 10")
    e(f"    s_add_u32 s37, s36, {XOFF}")
    e("    s_mov_b32 m0, s37")
    e("    s_nop 0")
    e("    buffer_load_dwordx4 v4, s[24:27], s36 offen lds")
    c("W -> LDS: wave w rows [128w,128w+128); voffset(u) = rr*8192 + ((p ^ ((4u+rr)<<1))<<4)")
    for u in range(2):
        e(f"    v_add_u32 v7, {4*u}, v3")
        e(f"    v_lshlrev_b32 v7, 1, v7")
        e(f"    v_xor_b32 v7, v7, v2")
        e(f"    v_lshlrev_b32 v7, 4, v7")
        e(f"    v_lshl_add_u32 v{10+u}, v3, 13, v7")
    e("    s_lshl_b32 s36, s18, 15")
    e("    s_lshl_b32 s37, s18, 20")
    e("    s_lshl_b32 s38, s16, 8")
    e("    s_add_u32 s37, s37, s38")
    e("    s_mov_b32 s38, 0")
    e("K12_DMA:")
    for u in range(2):
        e("    s_mov_b32 m0, s36")
        e("    s_add_u32 s36, s36, 1024")
        e(f"    buffer_load_dwordx4 v{10+u}, s[20:23], s37 offen lds")
        e("    s_add_u32 s37, s37, 32768")
    e("    s_add_u32 s38, s38, 1")
    e("    s_cmp_lt_u32 s38, 16")
    e("    s_cbranch_scc1 K12_DMA")
    st(2)
    c("B only: w_uk A-operand loads: c = 128cq + 32w + 16T + l15 ; byte = c*8192 + h*256 + kk*64 + g*16")
    e("    s_cmp_lt_u32 s2, 128")
    e("    s_cbranch_scc0 K12_NOUK")
    e("    v_lshlrev_b32 v5, 13, v2")
    e("    v_lshl_add_u32 v5, v3, 4, v5")
    e("    s_lshl_b32 s36, s17, 20")
    e("    s_lshl_b32 s37, s18, 18")
    e("    s_add_u32 s36, s36, s37")
    e("    s_lshl_b32 s37, s16, 8")
    e("    s_add_u32 s36, s36, s37")
    e("    s_add_u32 s37, s36, 0x20000")
    for T in range(2):
        for kk in range(4):
            e(f"    buffer_load_dwordx4 {vr(32+16*T+4*kk,4)}, v5, s[28:31], s{36+T} offen offset:{kk*64}")
    e("K12_NOUK:")
    c("LDS read addresses")
    e("    v_and_b32 v4, 3, v1")
    e("    v_lshlrev_b32 v4, 10, v4")
    e("    v_lshl_add_u32 v4, v3, 4, v4")
    e(f"    v_add_u32 v4, {XOFF}, v4")
    e("    v_lshrrev_b32 v8, 2, v2")
    e("    v_lshlrev_b32 v9, 1, v8")
    e("    v_lshl_add_u32 v8, v3, 3, v8")
    e("    v_bfe_u32 v12, v2, 1, 1")
    e("    v_xor_b32 v9, v9, v12")
    e("    s_lshl_b32 s36, s18, 2")
    e("    v_xor_b32 v9, s36, v9")
    e("    v_lshlrev_b32 v9, 4, v9")
    e("    v_lshl_add_u32 v8, v8, 8, v9")
    e("    v_and_b32 v9, 1, v2")
    e("    v_lshl_add_u32 v8, v9, 3, v8")
    e("    v_xor_b32 v9, 32, v8")
    e("    v_xor_b32 v5, 128, v8")
    e("    v_add_u32 v5, 1024, v5")
    e("    v_xor_b32 v6, 32, v5")
    e("    v_mov_b64 v[24:25], 0")
    e("    v_mov_b64 v[26:27], 0")
    e("    v_mov_b64 v[28:29], 0")
    e("    v_mov_b64 v[30:31], 0")
    e("    s_mov_b32 s38, 0")
    st(3)
    e("    s_waitcnt vmcnt(0)")
    e("    s_barrier")
    st(4)
    e("K12_MM:")
    e("    ds_read_b128 v[12:15], v4")
    e("    ds_read_b64_tr_b16 v[16:17], v8")
    e("    ds_read_b64_tr_b16 v[18:19], v5")
    e("    ds_read_b64_tr_b16 v[20:21], v9")
    e("    ds_read_b64_tr_b16 v[22:23], v6")
    e("    v_add_u32 v4, 64, v4")
    e("    v_add_u32 v8, 0x2000, v8")
    e("    v_add_u32 v9, 0x2000, v9")
    e("    v_add_u32 v5, 0x2000, v5")
    e("    v_add_u32 v6, 0x2000, v6")
    e("    s_add_u32 s38, s38, 1")
    e("    s_cmp_lt_u32 s38, 16")
    e("    s_waitcnt lgkmcnt(0)")
    e("    v_mfma_f32_16x16x32_bf16 v[24:27], v[16:19], v[12:15], v[24:27]")
    e("    v_mfma_f32_16x16x32_bf16 v[28:31], v[20:23], v[12:15], v[28:31]")
    e("    s_cbranch_scc1 K12_MM")
    st(5)
    e("    s_nop 7")
    e("    v_cvt_pk_bf16_f32 v16, v24, v25")
    e("    v_cvt_pk_bf16_f32 v17, v26, v27")
    e("    v_cvt_pk_bf16_f32 v18, v28, v29")
    e("    v_cvt_pk_bf16_f32 v19, v30, v31")
    e("    v_cmp_gt_u32 vcc, 4, v2")
    e("    s_cmp_lt_u32 s2, 128")
    e("    s_cbranch_scc1 K12_B2")
    c("A: store qA[b=l15][h*128 + 32w + 16tt + 4g ..]")
    e("    v_lshlrev_b32 v5, 13, v2")
    e("    v_lshl_add_u32 v5, v3, 3, v5")
    e("    s_lshl_b32 s36, s16, 8")
    e("    s_lshl_b32 s37, s18, 6")
    e("    s_add_u32 s36, s36, s37")
    e("    s_and_saveexec_b64 s[38:39], vcc")
    e(f"    buffer_store_dwordx2 v[16:17], v5, s[32:35], s36 offen offset:{WS_QA}")
    e(f"    buffer_store_dwordx2 v[18:19], v5, s[32:35], s36 offen offset:{WS_QA+32}")
    e("    s_endpgm")
    e("K12_B2:")
    c("B: q -> LDS bf16 [b][128]")
    e("    v_lshlrev_b32 v5, 8, v2")
    e("    v_lshl_add_u32 v5, v3, 3, v5")
    e("    s_lshl_b32 s37, s18, 6")
    e(f"    s_add_u32 s37, s37, {QOFF}")
    e("    v_add_u32 v5, s37, v5")
    e("    s_and_saveexec_b64 s[38:39], vcc")
    e("    ds_write_b64 v5, v[16:17]")
    e("    ds_write_b64 v5, v[18:19] offset:32")
    e("    s_mov_b64 exec, s[38:39]")
    e("    v_and_b32 v4, 3, v1")
    e("    v_lshlrev_b32 v4, 8, v4")
    e("    v_lshl_add_u32 v4, v3, 4, v4")
    e(f"    v_add_u32 v4, {QOFF}, v4")
    e("    s_waitcnt lgkmcnt(0)")
    e("    s_barrier")
    for kk in range(4):
        e(f"    ds_read_b128 {vr(64+4*kk,4)}, v4 offset:{kk*64}")
    e("    s_waitcnt lgkmcnt(0)")
    for T in range(2):
        for kk in range(4):
            cc = "0" if kk == 0 else vr(24+4*T,4)
            e(f"    v_mfma_f32_16x16x32_bf16 {vr(24+4*T,4)}, {vr(32+16*T+4*kk,4)}, {vr(64+4*kk,4)}, {cc}")
    e(f"    s_mov_b32 s36, {f32hex(SCALE_LOG2E)}")
    c("store in fragment layout")
    e("    v_lshlrev_b32 v5, 15, v2")
    e("    v_lshrrev_b32 v6, 1, v3")
    e("    v_lshl_add_u32 v5, v6, 9, v5")
    e("    v_and_b32 v6, 1, v3")
    e("    v_lshl_add_u32 v5, v6, 3, v5")
    e("    s_lshl_b32 s24, s17, 13")
    e("    s_lshl_b32 s25, s18, 11")
    e("    s_add_u32 s24, s24, s25")
    e("    s_lshl_b32 s25, s16, 4")
    e("    s_add_u32 s24, s24, s25")
    e(f"    s_add_u32 s24, s24, {WS_QABS}")
    for T in range(2):
        for r in range(4):
            e(f"    v_mul_f32 v{24+4*T+r}, s36, v{24+4*T+r}")
        e(f"    v_cvt_pk_bf16_f32 v{16+2*T}, v{24+4*T}, v{25+4*T}")
        e(f"    v_cvt_pk_bf16_f32 v{17+2*T}, v{26+4*T}, v{27+4*T}")
    e("    s_and_saveexec_b64 s[38:39], vcc")
    e("    buffer_store_dwordx2 v[16:17], v5, s[32:35], s24 offen")
    e("    buffer_store_dwordx2 v[18:19], v5, s[32:35], s24 offen offset:1024")
    if kst:
        e("    s_mov_b64 exec, -1")
        st(6)
        e("    s_lshl_b32 s58, s2, 6")
        e("    s_add_u32 s58, s58, 0x1000000")
        e("    v_mov_b32 v7, 0")
        for i in range(7):
            e(f"    v_mov_b32 v6, s{60+i}")
            e(f"    buffer_store_dword v6, v7, s[32:35], s58 offen offset:{4*i}")
    e("K12_END:")
    kend(name, 80)
    return name

def gen_k3():
    name = "k3_attn_kernel"
    kstart(name)
    e("    s_cmp_ge_u32 s2, 256")
    e("    s_cbranch_scc1 K3_END")
    e("    s_cmp_ge_u32 s2, 128")
    e("    s_cbranch_scc1 " + ("K3_END" if "noA" in EXP else "K3_A"))
    if "noB" in EXP:
        e("    s_endpgm")
    stamp(56)
    kload(4, "B_ckv"); kload(6, "ws")
    e("    v_lshrrev_b32 v4, 6, v0")
    e("    v_and_b32 v1, 63, v0")
    e("    v_readfirstlane_b32 s29, v4")
    e("    s_lshr_b32 s16, s2, 5")
    e("    s_and_b32 s17, s2, 31")
    e("    v_and_b32 v2, 31, v1")
    e("    v_lshrrev_b32 v3, 5, v1")
    e("    s_and_b32 s18, s29, 3")
    e("    s_lshr_b32 s30, s29, 2")
    e("    s_waitcnt lgkmcnt(0)")
    srd(8, 4, 33554432)
    srd(12, 6, WS_SIZE)
    vDma, vRdA, vRdT, vEx, vm, vl, val = 8, 12, 20, 28, 29, 174, 30
    vQ, vS, vP, vT, vAcc = 32, 64, 96, 104, 176
    vA2, vT2 = 240, 248
    c("Q operand loads: qabs[b][head=l31][128w + 16kk + 8hf ..]")
    e("    v_lshlrev_b32 v4, 4, v1")
    e("    s_lshl_b32 s20, s16, 15")
    e("    s_lshl_b32 s21, s18, 13")
    e("    s_add_u32 s20, s20, s21")
    e(f"    s_add_u32 s20, s20, {WS_QABS}")
    for kk in range(4):
        e(f"    buffer_load_dwordx4 {vr(vQ+4*kk,4)}, v4, s[12:15], s20 offen offset:{kk*1024}")
    e("    s_add_u32 s21, s20, 4096")
    for kk in range(4,8):
        e(f"    buffer_load_dwordx4 {vr(vQ+4*kk,4)}, v4, s[12:15], s21 offen offset:{(kk-4)*1024}")
    c("DMA voffsets: rr*1024 + ((p ^ (rr<<2) ^ u)*16)")
    e("    v_lshrrev_b32 v4, 4, v1")
    e("    v_and_b32 v5, 15, v1")
    e("    v_lshlrev_b32 v6, 2, v4")
    e("    v_xor_b32 v5, v5, v6")
    e("    v_lshlrev_b32 v6, 10, v4")
    for u in range(4):
        e(f"    v_xor_b32 v7, {u}, v5")
        e(f"    v_lshl_add_u32 v{vDma+u}, v7, 4, v6")
    c("global base soffset s19 (tile g) ; LDS wave base s22 = (g*8+w)*8192")
    e("    s_lshl_b32 s19, s16, 23")
    e("    s_lshl_b32 s21, s17, 15")
    e("    s_add_u32 s19, s19, s21")
    e("    s_lshl_b32 s21, s18, 8")
    e("    s_add_u32 s19, s19, s21")
    e("    s_lshl_b32 s21, s30, 20")
    e("    s_add_u32 s19, s19, s21")
    e("    s_lshl_b32 s22, s30, 3")
    e("    s_add_u32 s22, s22, s18")
    e("    s_lshl_b32 s22, s22, 13")
    c("prologue DMA: tiles it=0,1 -> stages 0,1")
    e("    s_mov_b32 s23, s22")
    e("    s_mov_b32 s24, s19")
    e("    s_mov_b32 s26, 0")
    e("K3_BPRO:")
    for i in range(8):
        e(f"    s_mov_b32 m0, s23")
        e(f"    s_add_u32 s23, s23, 1024")
        e(f"    buffer_load_dwordx4 v{vDma+(i&3)}, s[8:11], s24 offen nt lds")
        e(f"    s_add_u32 s24, s24, 4096")
    e("    s_add_u32 s23, s23, 24576")
    e("    s_add_u32 s24, s24, 0x1f8000")
    e("    s_add_u32 s26, s26, 1")
    e("    s_cmp_lt_u32 s26, 2")
    e("    s_cbranch_scc1 K3_BPRO")
    c("GEMM1 read addresses: base + r*256 + ((hf ^ f(r))<<4), f(r)=((r&3)<<2)|((r>>2)&3)")
    e("    v_and_b32 v4, 3, v2")
    e("    v_lshlrev_b32 v4, 2, v4")
    e("    v_bfe_u32 v5, v2, 2, 2")
    e("    v_or_b32 v4, v4, v5")
    e("    v_xor_b32 v4, v4, v3")
    e("    v_lshlrev_b32 v4, 4, v4")
    e("    v_lshl_add_u32 v4, v2, 8, v4")
    e("    v_add_u32 v4, s22, v4")
    for kk in range(8):
        e(f"    v_xor_b32 v{vRdA+kk}, {kk<<5}, v4")
    c("tr read addresses")
    e("    v_and_b32 v4, 15, v1")
    e("    v_lshrrev_b32 v5, 2, v4")
    e("    v_bfe_u32 v6, v1, 4, 1")
    e("    v_lshlrev_b32 v6, 1, v6")
    e("    v_bfe_u32 v7, v4, 1, 1")
    e("    v_add_u32 v6, v6, v7")
    e("    v_lshlrev_b32 v7, 2, v5")
    e("    v_or_b32 v7, v7, v3")
    e("    v_xor_b32 v6, v6, v7")
    e("    v_lshlrev_b32 v6, 4, v6")
    e("    v_lshlrev_b32 v7, 2, v3")
    e("    v_add_u32 v7, v7, v5")
    e("    v_lshl_add_u32 v6, v7, 8, v6")
    e("    v_and_b32 v7, 1, v4")
    e("    v_lshl_add_u32 v6, v7, 3, v6")
    e("    v_add_u32 v6, s22, v6")
    for mt in range(4):
        e(f"    v_xor_b32 v{vRdT+2*mt}, {(mt<<6)}, v6")
        e(f"    v_xor_b32 v{vRdT+2*mt+1}, {(mt<<6)^32}, v6")
        e(f"    v_add_u32 v{vRdT+2*mt+1}, 2048, v{vRdT+2*mt+1}")
    c("exchange: read base vEx = 131072 + g*16384 + lane*16 ; own write address v4 = + w*4096")
    e("    s_lshl_b32 s25, s30, 14")
    e("    s_add_u32 s25, s25, 131072")
    e(f"    v_lshl_add_u32 v{vEx}, v1, 4, s25")
    e("    s_lshl_b32 s25, s18, 12")
    e(f"    v_add_u32 v4, s25, v{vEx}")
    if "warm" in EXP:
        c("dry pass over the loop + epilogue with EXEC=0 while the first tiles are in flight (instruction cache warm-up)")
        e("    s_mov_b64 exec, 0")
        e("    s_mov_b32 s26, 3")
        e("    s_branch K3_BLOOP")
        e("K3_BWARM_DONE:")
        e("    s_mov_b64 exec, -1")
    e(f"    v_mov_b32 v{vm}, 0xff7fffff")
    e(f"    v_mov_b32 v{vl}, 0")
    for j in range(0,64,2):
        e(f"    v_mov_b64 {vr(vAcc+j,2)}, 0")
    e("    s_mov_b32 s26, 0")
    stamp(56)
    e("K3_BLOOP:")
    e("    s_cbranch_execz K3_SW1")
    e("    s_waitcnt vmcnt(8)")
    e("K3_SW1:")
    e("    s_and_b32 s27, s26, 1")
    e("    s_lshl_b32 s27, s27, 15")
    for kk in range(8):
        e(f"    v_add_u32 v{vA2+kk}, s27, v{vRdA+kk}")
    for kk in range(8):
        e(f"    ds_read_b128 {vr(vT+4*kk,4)}, v{vA2+kk}")
    for kk in range(8):
        e(f"    v_add_u32 v{vT2+kk}, s27, v{vRdT+kk}")
    e("    s_waitcnt lgkmcnt(0)")
    for kk in range(8):
        cc = "0" if kk == 0 else vr(vS,16)
        e(f"    v_mfma_f32_32x32x16_bf16 {vr(vS,16)}, {vr(vT+4*kk,4)}, {vr(vQ+4*kk,4)}, {cc}")
    e("    s_nop 7")
    e("    s_nop 3")
    e("    s_cbranch_execz K3_SB1")
    e("    s_barrier")
    e("K3_SB1:")
    for q in range(4):
        e(f"    ds_write_b128 v4, {vr(vS+4*q,4)} offset:{q*1024}")
    e("    s_waitcnt lgkmcnt(0)")
    e("    s_cbranch_execz K3_SB2")
    e("    s_barrier")
    e("K3_SB2:")
    for w2 in range(4):
        for q in range(4):
            e(f"    ds_read_b128 {vr(vT+16*w2+4*q,4)}, v{vEx} offset:{w2*4096 + q*1024}")
    e("    s_waitcnt lgkmcnt(0)")
    for r in range(0,16,2):
        e(f"    v_pk_add_f32 {vr(vS+r,2)}, {vr(vT+r,2)}, {vr(vT+16+r,2)}")
        e(f"    v_pk_add_f32 {vr(vT+32+r,2)}, {vr(vT+32+r,2)}, {vr(vT+48+r,2)}")
        e(f"    v_pk_add_f32 {vr(vS+r,2)}, {vr(vS+r,2)}, {vr(vT+32+r,2)}")
    e(f"    v_max3_f32 v5, v{vS}, v{vS+1}, v{vS+2}")
    for r in range(3, 15, 2):
        e(f"    v_max3_f32 v5, v5, v{vS+r}, v{vS+r+1}")
    e(f"    v_max_f32 v5, v5, v{vS+15}")
    e("    v_mov_b32 v6, v5")
    e("    s_nop 1")
    e("    v_permlane32_swap_b32 v5, v6")
    e("    s_nop 1")
    e("    v_max_f32 v5, v5, v6")
    e(f"    v_max_f32 v5, v5, v{vm}")
    e(f"    v_sub_f32 v6, v{vm}, v5")
    e(f"    v_exp_f32 v{val}, v6")
    e(f"    v_mov_b32 v{vm}, v5")
    for r in range(16):
        e(f"    v_sub_f32 v{vS+r}, v{vS+r}, v5")
        e(f"    v_exp_f32 v{vS+r}, v{vS+r}")
    e(f"    v_mov_b32 v{val+1}, v{val}")
    e(f"    v_mul_f32 v{vl}, v{vl}, v{val}")
    for r in range(16):
        e(f"    v_add_f32 v{vl}, v{vl}, v{vS+r}")
    for j in range(8):
        e(f"    v_cvt_pk_bf16_f32 v{vP+j}, v{vS+2*j}, v{vS+2*j+1}")
    for j in range(0,64,2):
        e(f"    v_pk_mul_f32 {vr(vAcc+j,2)}, {vr(vAcc+j,2)}, {vr(val,2)}")
    for mt in range(4):
        for m in range(2):
            for sec in range(2):
                e(f"    ds_read_b64_tr_b16 {vr(vT+8*mt+4*m+2*sec,2)}, v{vT2+2*mt+sec} offset:{m*4096}")
    c("next DMA tile (it+2) into the stage just consumed; out of range -> dummy (OOB) loads keep vmcnt uniform")
    e("    s_add_u32 s28, s26, 2")
    e("    s_lshl_b32 s24, s28, 21")
    e("    s_add_u32 s24, s24, s19")
    e("    s_cmp_lt_u32 s28, 4")
    e("    s_cselect_b32 s24, s24, 0x80000000")
    e("    s_add_u32 s23, s22, s27")
    e("    s_waitcnt lgkmcnt(0)")
    for i in range(8):
        e(f"    s_mov_b32 m0, s23")
        e(f"    s_add_u32 s23, s23, 1024")
        e(f"    buffer_load_dwordx4 v{vDma+(i&3)}, s[8:11], s24 offen nt lds")
        e(f"    s_add_u32 s24, s24, 4096")
    for mt in range(4):
        for m in range(2):
            e(f"    v_mfma_f32_32x32x16_bf16 {vr(vAcc+16*mt,16)}, {vr(vT+8*mt+4*m,4)}, {vr(vP+4*m,4)}, {vr(vAcc+16*mt,16)}")
    e("    s_add_u32 s26, s26, 1")
    e("    s_cmp_lt_u32 s26, 4")
    e("    s_cbranch_scc1 K3_BLOOP")
    stamp(56)
    c("==== B epilogue: merge the two key groups through LDS")
    e("    s_nop 7")
    e("    s_nop 3")
    e(f"    v_mov_b32 v6, v{vl}")
    e("    s_nop 1")
    e(f"    v_permlane32_swap_b32 v{vl}, v6")
    e("    s_nop 1")
    e(f"    v_add_f32 v{vl}, v{vl}, v6")
    e("    s_cbranch_execz K3_SB3")
    e("    s_waitcnt vmcnt(0)")
    e("    s_barrier")
    e("K3_SB3:")
    e("    v_lshlrev_b32 v5, 4, v1")
    e("    s_lshl_b32 s25, s18, 14")
    e("    v_add_u32 v5, s25, v5")
    e("    s_cmp_eq_u32 s30, 0")
    e("    s_cbranch_scc1 K3_BG0")
    for j in range(16):
        e(f"    ds_write_b128 v5, {vr(vAcc+4*j,4)} offset:{j*1024}")
    e(f"    ds_write_b32 v4, v{vm}")
    e(f"    ds_write_b32 v4, v{vl} offset:1024")
    e("    s_waitcnt lgkmcnt(0)")
    e("    s_cbranch_execz K3_BG0")
    e("    s_barrier")
    e("    s_endpgm")
    e("K3_BG0:")
    e("    s_cbranch_execz K3_SB5")
    e("    s_barrier")
    e("K3_SB5:")
    for j in range(16):
        e(f"    ds_read_b128 {vr(vT+4*j,4)}, v5 offset:{j*1024}")
    e(f"    ds_read_b32 v6, v4 offset:16384")
    e(f"    ds_read_b32 v7, v4 offset:{16384+1024}")
    e("    s_waitcnt lgkmcnt(0)")
    e(f"    v_max_f32 v5, v{vm}, v6")
    e(f"    v_sub_f32 v8, v{vm}, v5")
    e(f"    v_sub_f32 v9, v6, v5")
    e(f"    v_exp_f32 v8, v8")
    e(f"    v_exp_f32 v10, v9")
    e(f"    v_mov_b32 v{vm}, v5")
    e(f"    v_mov_b32 v9, v8")
    e(f"    v_mov_b32 v11, v10")
    e(f"    v_mul_f32 v{vl}, v{vl}, v8")
    e(f"    v_fmac_f32 v{vl}, v7, v10")
    for j in range(0,64,2):
        e(f"    v_pk_mul_f32 {vr(vAcc+j,2)}, {vr(vAcc+j,2)}, v[8:9]")
        e(f"    v_pk_fma_f32 {vr(vAcc+j,2)}, {vr(vT+j,2)}, v[10:11], {vr(vAcc+j,2)}")
    c("stats: Bstat[b][split][0/1][h] by wave 0 lanes<32")
    e("    v_lshlrev_b32 v5, 2, v2")
    e("    s_lshl_b32 s23, s2, 8")
    e(f"    s_add_u32 s23, s23, {WS_BSTAT}")
    e("    v_cmp_gt_u32 vcc, 32, v0")
    e("    s_and_saveexec_b64 s[26:27], vcc")
    e(f"    buffer_store_dword v{vm}, v5, s[12:15], s23 offen")
    e(f"    buffer_store_dword v{vl}, v5, s[12:15], s23 offen offset:128")
    e("    s_mov_b64 exec, s[26:27]")
    c("O^T -> bf16 -> LDS [h][128c] (row stride 272) -> coalesced stores to Bpart[b][split][h][c]")
    for mt in range(4):
        for q in range(4):
            a = vAcc + 16*mt + 4*q
            e(f"    v_cvt_pk_bf16_f32 v{vT+2*(4*mt+q)}, v{a}, v{a+1}")
            e(f"    v_cvt_pk_bf16_f32 v{vT+2*(4*mt+q)+1}, v{a+2}, v{a+3}")
    e("    s_mul_i32 s24, s18, 8704")
    e("    s_add_u32 s24, s24, 65536")
    e("    v_mul_u32_u24 v5, 272, v2")
    e("    v_lshl_add_u32 v5, v3, 3, v5")
    e("    v_add_u32 v5, s24, v5")
    for mt in range(4):
        for q in range(4):
            e(f"    ds_write_b64 v5, {vr(vT+2*(4*mt+q),2)} offset:{(32*mt+8*q)*2}")
    e("    v_lshrrev_b32 v6, 4, v1")
    e("    v_and_b32 v7, 15, v1")
    e("    v_mul_u32_u24 v5, 272, v6")
    e("    v_lshl_add_u32 v5, v7, 4, v5")
    e("    v_add_u32 v5, s24, v5")
    e("    v_lshlrev_b32 v6, 10, v6")
    e("    v_lshl_add_u32 v6, v7, 4, v6")
    e("    s_lshl_b32 s23, s2, 15")
    e("    s_lshl_b32 s24, s18, 8")
    e("    s_add_u32 s23, s23, s24")
    e(f"    s_add_u32 s23, s23, {WS_BPART}")
    e("    s_waitcnt lgkmcnt(0)")
    for i in range(8):
        e(f"    ds_read_b128 {vr(vT+4*i,4)}, v5 offset:{i*4*272}")
    e("    s_waitcnt lgkmcnt(0)")
    for i in range(8):
        e(f"    buffer_store_dwordx4 {vr(vT+4*i,4)}, v6, s[12:15], s23 offen")
        if i < 7:
            e("    s_add_u32 s23, s23, 4096")
    stamp(56)
    if "stamp" in EXP:
        e("    s_waitcnt vmcnt(0)")
    stamp(56)
    stamp_flush(12, 6)
    if "warm" in EXP:
        e("    s_cbranch_execz K3_BWARM_DONE")
    e("    s_endpgm")

    e("K3_A:")
    STAMP_N[0] = 0
    stamp(56)
    kload(4, "A_k"); kload(6, "A_v"); kload(28, "ws")
    e("    v_lshrrev_b32 v4, 6, v0")
    e("    v_and_b32 v1, 63, v0")
    e("    v_readfirstlane_b32 s18, v4")
    e("    s_sub_u32 s16, s2, 128")
    e("    s_lshr_b32 s17, s16, 2")
    e("    s_and_b32 s19, s16, 3")
    c("s20 = byte base of this wave's keys: ((b*8+kvh)*8192 + 6144 + 512sx + 64w)*256")
    e("    s_lshl_b32 s20, s17, 21")
    e("    s_lshl_b32 s21, s19, 17")
    e("    s_add_u32 s20, s20, s21")
    e("    s_lshl_b32 s21, s18, 14")
    e("    s_add_u32 s20, s20, s21")
    e(f"    s_add_u32 s20, s20, {6144*256}")
    e("    v_and_b32 v2, 15, v1")
    e("    v_lshrrev_b32 v3, 4, v1")
    e("    s_waitcnt lgkmcnt(0)")
    srd(8, 4, 67108864)
    srd(12, 6, 67108864)
    srd(24, 28, WS_SIZE)
    vQ, vP, vK, vS, vAcc = 16, 32, 64, 128, 144
    c("Q operand: qA[b][(kvh*4 + (l&3))*128 + 32kk + 8g]")
    e("    v_and_b32 v4, 3, v1")
    e("    v_lshlrev_b32 v4, 8, v4")
    e("    v_lshlrev_b32 v5, 4, v3")
    e("    v_add_u32 v4, v4, v5")
    e("    s_lshl_b32 s21, s17, 10")
    e(f"    s_add_u32 s21, s21, {WS_QA}")
    for kk in range(4):
        e(f"    buffer_load_dwordx4 {vr(vQ+4*kk,4)}, v4, s[24:27], s21 offen offset:{kk*64}")
    c("K loads: key = 16T + l15 ; byte = key*256 + kk*64 + g*16")
    e("    v_lshl_add_u32 v6, v2, 8, v5")
    for T in range(4):
        e(f"    s_add_u32 s22, s20, {T*4096}")
        for kk in range(4):
            e(f"    buffer_load_dwordx4 {vr(vK+16*T+4*kk,4)}, v6, s[8:11], s22 offen offset:{kk*64} nt")
    c("V DMA voffsets: rr*256 + ((p ^ ((4u+rr)<<1))<<4)")
    for u in range(2):
        e(f"    v_add_u32 v7, {4*u}, v3")
        e(f"    v_lshlrev_b32 v7, 1, v7")
        e(f"    v_xor_b32 v7, v7, v2")
        e(f"    v_lshlrev_b32 v7, 4, v7")
        e(f"    v_lshl_add_u32 v{10+u}, v3, 8, v7")
    e("    s_lshl_b32 s23, s18, 14")
    e("    s_mov_b32 s22, s23")
    e("    s_mov_b32 s21, s20")
    for i in range(16):
        e(f"    s_mov_b32 m0, s22")
        e(f"    s_add_u32 s22, s22, 1024")
        e(f"    buffer_load_dwordx4 v{10+(i&1)}, s[12:15], s21 offen nt lds")
        e(f"    s_add_u32 s21, s21, 1024")
    stamp(56)
    c("S^T tiles")
    for T in range(4):
        e(f"    s_waitcnt vmcnt({16 + 4*(3-T)})")
        for kk in range(4):
            cc = "0" if kk == 0 else vr(vS+4*T,4)
            e(f"    v_mfma_f32_16x16x32_bf16 {vr(vS+4*T,4)}, {vr(vK+16*T+4*kk,4)}, {vr(vQ+4*kk,4)}, {cc}")
    stamp(56)
    c("tr read base address: r = 4g + (i>>2); chunk0 = (i>>1)&1; f = (r&7)<<1")
    e("    v_lshrrev_b32 v8, 2, v2")
    e("    v_lshl_add_u32 v8, v3, 2, v8")
    e("    v_and_b32 v9, 7, v8")
    e("    v_lshlrev_b32 v9, 1, v9")
    e("    v_bfe_u32 v12, v2, 1, 1")
    e("    v_xor_b32 v9, v9, v12")
    e("    v_lshlrev_b32 v9, 4, v9")
    e("    v_lshl_add_u32 v8, v8, 8, v9")
    e("    v_and_b32 v9, 1, v2")
    e("    v_lshl_add_u32 v8, v9, 3, v8")
    e("    v_add_u32 v8, s23, v8")
    for dt in range(8):
        e(f"    v_xor_b32 v{48+dt}, {dt<<5}, v8")
    for j in range(0,32,2):
        e(f"    v_mov_b64 {vr(vAcc+j,2)}, 0")
    c("scale + max")
    e(f"    s_mov_b32 s22, {f32hex(SCALE_LOG2E)}")
    for r in range(16):
        e(f"    v_mul_f32 v{vS+r}, s22, v{vS+r}")
    e(f"    v_max3_f32 v5, v{vS}, v{vS+1}, v{vS+2}")
    for r in range(3, 15, 2):
        e(f"    v_max3_f32 v5, v5, v{vS+r}, v{vS+r+1}")
    e(f"    v_max_f32 v5, v5, v{vS+15}")
    e("    v_mov_b32 v6, v5")
    e("    s_nop 1")
    e("    v_permlane32_swap_b32 v5, v6")
    e("    s_nop 1")
    e("    v_max_f32 v5, v5, v6")
    e("    ds_swizzle_b32 v6, v5 offset:0x401F")
    e("    s_waitcnt lgkmcnt(0)")
    e("    v_max_f32 v5, v5, v6")
    for r in range(16):
        e(f"    v_sub_f32 v{vS+r}, v{vS+r}, v5")
        e(f"    v_exp_f32 v{vS+r}, v{vS+r}")
    e(f"    v_add_f32 v7, v{vS}, v{vS+1}")
    for r in range(2, 16):
        e(f"    v_add_f32 v7, v7, v{vS+r}")
    e("    v_mov_b32 v6, v7")
    e("    s_nop 1")
    e("    v_permlane32_swap_b32 v7, v6")
    e("    s_nop 1")
    e("    v_add_f32 v7, v7, v6")
    e("    ds_swizzle_b32 v6, v7 offset:0x401F")
    e("    s_waitcnt lgkmcnt(0)")
    e("    v_add_f32 v7, v7, v6")
    for j in range(8):
        e(f"    v_cvt_pk_bf16_f32 v{vP+j}, v{vS+2*j}, v{vS+2*j+1}")
    stamp(56)
    e("    s_waitcnt vmcnt(0)")
    stamp(56)
    vOp = vK
    for KG in range(2):
        for dt in range(8):
            for sec in range(2):
                e(f"    ds_read_b64_tr_b16 {vr(vOp+32*KG+4*dt+2*sec,2)}, v{48+dt} offset:{KG*8192+sec*4096}")
    for KG in range(2):
        e(f"    s_waitcnt lgkmcnt({0 if KG else 15})")
        if KG == 0:
            e(f"    s_waitcnt lgkmcnt(0)")
        for dt in range(8):
            e(f"    v_mfma_f32_16x16x32_bf16 {vr(vAcc+4*dt,4)}, {vr(vOp+32*KG+4*dt,4)}, {vr(vP+4*KG,4)}, {vr(vAcc+4*dt,4)}")
    c("store partial: Apart[b][kvh][split=8sx+w][head][128] f32, lanes l15<4")
    e("    v_lshlrev_b32 v8, 9, v2")
    e("    v_lshl_add_u32 v8, v3, 4, v8")
    e("    s_lshl_b32 s21, s16, 3")
    e("    s_add_u32 s21, s21, s18")
    e("    s_lshl_b32 s22, s21, 11")
    e(f"    s_add_u32 s22, s22, {WS_APART}")
    e("    v_lshlrev_b32 v9, 2, v2")
    e("    s_lshl_b32 s21, s21, 5")
    e(f"    s_add_u32 s21, s21, {WS_ASTAT}")
    e("    v_cmp_gt_u32 vcc, 4, v2")
    e("    s_and_saveexec_b64 s[30:31], vcc")
    e("    s_nop 4")
    for dt in range(8):
        e(f"    buffer_store_dwordx4 {vr(vAcc+4*dt,4)}, v8, s[24:27], s22 offen offset:{dt*64}")
    e("    buffer_store_dword v5, v9, s[24:27], s21 offen")
    e("    buffer_store_dword v7, v9, s[24:27], s21 offen offset:16")
    e("    s_mov_b64 exec, -1")
    stamp(56)
    if "stamp" in EXP:
        e("    s_waitcnt vmcnt(0)")
    stamp(56)
    stamp_flush(24, 6)
    e("K3_END:")
    kend(name, 256)
    return name

def gen_k4():
    name = "k4_comb_kernel"
    kstart(name)
    e("    s_cmp_ge_u32 s2, 320")
    e("    s_cbranch_scc1 K4_END")
    e("    s_cmp_ge_u32 s2, 256")
    e("    s_cbranch_scc1 K4_A")
    kload(4, "B_wuv"); kload(6, "ws")
    e("    s_waitcnt lgkmcnt(0)")
    srd(8, 4, 4194304)
    srd(12, 6, WS_SIZE)
    e("    s_lshr_b32 s16, s2, 3")
    e("    s_and_b32 s17, s2, 7")
    g = RowGemv(16, 4, 64)
    XOFF, REDOFF = 0, 4096
    c("W offsets: (64j + lr)*8192 + h*256 + lc*16")
    e("    v_lshrrev_b32 v1, 4, v0")
    e("    v_lshlrev_b32 v1, 13, v1")
    e("    v_and_b32 v2, 15, v0")
    e("    v_lshlrev_b32 v2, 4, v2")
    e("    v_add_u32 v1, v1, v2")
    e("    s_lshl_b32 s18, s17, 19")
    e("    s_lshl_b32 s19, s16, 8")
    e("    s_add_u32 s18, s18, s19")
    e("    v_add_u32 v1, s18, v1")
    g.issue(8, 1, 16*8192, 18)
    c("stats for (b = wave, h): lane s = lane&31")
    e("    v_lshrrev_b32 v2, 6, v0")
    e("    v_and_b32 v3, 31, v0")
    e("    v_lshlrev_b32 v4, 5, v2")
    e("    v_add_u32 v4, v4, v3")
    e("    v_lshlrev_b32 v4, 8, v4")
    e("    s_lshl_b32 s18, s16, 2")
    e(f"    s_add_u32 s18, s18, {WS_BSTAT}")
    e("    buffer_load_dword v5, v4, s[12:15], s18 offen")
    e("    buffer_load_dword v6, v4, s[12:15], s18 offen offset:128")
    c("partial loads")
    e("    v_lshlrev_b32 v7, 20, v2")
    e("    v_and_b32 v8, 63, v0")
    e("    v_lshlrev_b32 v9, 1, v8")
    e("    v_add_u32 v7, v7, v9")
    e("    s_lshl_b32 s18, s16, 10")
    e("    s_lshl_b32 s19, s17, 7")
    e("    s_add_u32 s18, s18, s19")
    e(f"    s_add_u32 s18, s18, {WS_BPART}")
    for s in range(32):
        e(f"    buffer_load_ushort v{16+s}, v7, s[12:15], s18 offen")
        if s < 31:
            e(f"    s_add_u32 s18, s18, 32768")
    e("    s_waitcnt vmcnt(32)")
    e("    v_mov_b32 v10, v5")
    for off in (0x041F, 0x081F, 0x101F, 0x201F, 0x401F):
        e(f"    ds_swizzle_b32 v11, v10 offset:{off:#x}")
        e("    s_waitcnt lgkmcnt(0)")
        e("    v_max_f32 v10, v10, v11")
    e("    v_sub_f32 v5, v5, v10")
    e("    v_exp_f32 v5, v5")
    e("    v_mul_f32 v6, v6, v5")
    for off in (0x041F, 0x081F, 0x101F, 0x201F, 0x401F):
        e(f"    ds_swizzle_b32 v11, v6 offset:{off:#x}")
        e("    s_waitcnt lgkmcnt(0)")
        e("    v_add_f32 v6, v6, v11")
    e("    v_rcp_f32 v6, v6")
    e("    s_nop 0")
    e("    v_mul_f32 v5, v5, v6")
    e("    v_mov_b32 v12, 0")
    e("    s_waitcnt vmcnt(0)")
    for s in range(32):
        e(f"    v_readlane_b32 s20, v5, {s}")
        e(f"    v_lshlrev_b32 v{16+s}, 16, v{16+s}")
        e(f"    s_nop 0")
        e(f"    v_fmac_f32 v12, s20, v{16+s}")
    c("x[cl][b] -> LDS")
    e("    v_lshlrev_b32 v8, 4, v8")
    e("    v_lshlrev_b32 v9, 2, v2")
    e("    v_add_u32 v8, v8, v9")
    e(f"    ds_write_b32 v8, v12 offset:{XOFF}")
    e("    s_waitcnt lgkmcnt(0)")
    e("    s_barrier")
    g.compute(XOFF, REDOFF, 0)
    c("store ctxp[j][b][h*128+d]: o=t: b=t>>7, d=t&127 ; o=t+256: b+2")
    e("    v_lshrrev_b32 v1, 7, v0")
    e("    v_lshlrev_b32 v1, 14, v1")
    e("    v_and_b32 v2, 127, v0")
    e("    v_lshlrev_b32 v2, 2, v2")
    e("    v_add_u32 v1, v1, v2")
    e("    s_lshl_b32 s18, s17, 16")
    e("    s_lshl_b32 s19, s16, 9")
    e("    s_add_u32 s18, s18, s19")
    e(f"    s_add_u32 s18, s18, {WS_CTXP}")
    e(f"    buffer_store_dword v{g.vT+2}, v1, s[12:15], s18 offen")
    e(f"    buffer_store_dword v{g.vT+3}, v1, s[12:15], s18 offen offset:0")
    L[-1] = f"    s_add_u32 s18, s18, 32768"
    e(f"    buffer_store_dword v{g.vT+3}, v1, s[12:15], s18 offen")
    e("    s_endpgm")
    e("K4_A:")
    kload(6, "ws")
    e("    s_waitcnt lgkmcnt(0)")
    srd(12, 6, WS_SIZE)
    e("    s_sub_u32 s16, s2, 256")
    e("    s_lshl_b32 s16, s16, 8")
    e("    v_add_u32 v1, s16, v0")
    e("    v_lshrrev_b32 v2, 7, v1")
    e("    v_and_b32 v3, 127, v1")
    e("    v_lshrrev_b32 v4, 2, v2")
    e("    v_and_b32 v5, 3, v2")
    c("stat offset: ((b*8+kvh)*32 + s)*32 + hh*4")
    e("    v_lshlrev_b32 v6, 10, v4")
    e("    v_lshlrev_b32 v7, 2, v5")
    e("    v_add_u32 v6, v6, v7")
    e(f"    s_mov_b32 s18, {WS_ASTAT}")
    for s_ in range(32):
        e(f"    buffer_load_dword v{16+s_}, v6, s[12:15], s18 offen offset:{s_*32}")
        e(f"    buffer_load_dword v{48+s_}, v6, s[12:15], s18 offen offset:{s_*32+16}")
    c("partial offset: (((b*8+kvh)*32+s)*4 + hh)*512 + d*4")
    e("    v_lshlrev_b32 v8, 16, v4")
    e("    v_lshlrev_b32 v9, 9, v5")
    e("    v_add_u32 v8, v8, v9")
    e("    v_lshlrev_b32 v9, 2, v3")
    e("    v_add_u32 v8, v8, v9")
    e(f"    s_mov_b32 s18, {WS_APART}")
    for s_ in range(32):
        e(f"    buffer_load_dword v{80+s_}, v8, s[12:15], s18 offen")
        if s_ < 31:
            e("    s_add_u32 s18, s18, 2048")
    e("    s_waitcnt vmcnt(32)")
    e("    v_max_f32 v10, v16, v17")
    for s_ in range(2, 32):
        e(f"    v_max_f32 v10, v10, v{16+s_}")
    e("    v_mov_b32 v11, 0")
    for s_ in range(32):
        e(f"    v_sub_f32 v{16+s_}, v{16+s_}, v10")
        e(f"    v_exp_f32 v{16+s_}, v{16+s_}")
        e("    s_nop 0")
        e(f"    v_fmac_f32 v11, v{16+s_}, v{48+s_}")
    e("    v_rcp_f32 v11, v11")
    e("    v_mov_b32 v12, 0")
    e("    s_waitcnt vmcnt(0)")
    for s_ in range(32):
        e(f"    v_fmac_f32 v12, v{16+s_}, v{80+s_}")
    e("    v_mul_f32 v12, v12, v11")
    e("    v_lshlrev_b32 v1, 2, v1")
    e(f"    s_mov_b32 s18, {WS_OA}")
    e("    buffer_store_dword v12, v1, s[12:15], s18 offen")
    e("K4_END:")
    kend(name, g.vend)
    return name

def gen_k5():
    name = "k5_oproj_kernel"
    kstart(name)
    e("    s_cmp_ge_u32 s2, 128")
    e("    s_cbranch_scc1 K5_END")
    kload(4, "A_wo"); kload(6, "B_wo"); kload(8, "ws")
    e("    s_waitcnt lgkmcnt(0)")
    e("    s_lshr_b32 s3, s2, 6")
    e("    s_cmp_eq_u32 s3, 0")
    e("    s_cselect_b32 s4, s4, s6")
    e("    s_cselect_b32 s5, s5, s7")
    srd(12, 4, 4194304)
    srd(16, 8, WS_SIZE)
    e("    s_bfe_u32 s20, s2, 0x40002")
    e("    s_and_b32 s21, s2, 3")
    g = RowGemv(16, 16, 16)
    XOFF, REDOFF = 0, 4096
    e("    v_lshrrev_b32 v1, 4, v0")
    e("    v_lshlrev_b32 v1, 10, v1")
    e("    v_and_b32 v2, 15, v0")
    e("    v_lshlrev_b32 v2, 4, v2")
    e("    v_add_u32 v1, v1, v2")
    e("    s_lshl_b32 s22, s20, 18")
    e("    s_lshl_b32 s23, s21, 8")
    e("    s_add_u32 s22, s22, s23")
    e("    v_add_u32 v1, s22, v1")
    g.issue(12, 1, 16*1024, 22)
    c("stage x: row r = 256rc + t")
    e("    v_lshlrev_b32 v2, 2, v0")
    e("    s_lshl_b32 s22, s20, 10")
    e("    s_cmp_eq_u32 s3, 0")
    e("    s_cbranch_scc0 K5_XB")
    e(f"    s_add_u32 s22, s22, {WS_OA}")
    for b in range(4):
        e(f"    buffer_load_dword v{8+b}, v2, s[16:19], s22 offen")
        e(f"    s_add_u32 s22, s22, 16384")
    e("    s_waitcnt vmcnt(0)")
    e("    s_branch K5_XDONE")
    e("K5_XB:")
    e(f"    s_add_u32 s22, s22, {WS_CTXP}")
    vtmp = g.vX
    for j in range(8):
        for b in range(4):
            e(f"    buffer_load_dword v{vtmp+4*j+b}, v2, s[16:19], s22 offen")
            e(f"    s_add_u32 s22, s22, 16384")
    e("    s_waitcnt vmcnt(0)")
    for b in range(4):
        e(f"    v_add_f32 v{8+b}, v{vtmp+b}, v{vtmp+4+b}")
        for j in range(2, 8):
            e(f"    v_add_f32 v{8+b}, v{8+b}, v{vtmp+4*j+b}")
    e("K5_XDONE:")
    e("    v_lshlrev_b32 v2, 4, v0")
    e(f"    ds_write_b128 v2, v[8:11] offset:{XOFF}")
    e("    s_waitcnt lgkmcnt(0)")
    e("    s_barrier")
    g.compute(XOFF, REDOFF, 0)
    c("store outp[mat][rc][b][cs*128+col]")
    e("    v_lshrrev_b32 v1, 7, v0")
    e("    v_lshlrev_b32 v1, 11, v1")
    e("    v_and_b32 v2, 127, v0")
    e("    v_lshlrev_b32 v2, 2, v2")
    e("    v_add_u32 v1, v1, v2")
    e("    s_lshl_b32 s22, s3, 17")
    e("    s_lshl_b32 s23, s20, 13")
    e("    s_add_u32 s22, s22, s23")
    e("    s_lshl_b32 s23, s21, 9")
    e("    s_add_u32 s22, s22, s23")
    e(f"    s_add_u32 s22, s22, {WS_OUTP}")
    e(f"    buffer_store_dword v{g.vT+2}, v1, s[16:19], s22 offen")
    e(f"    s_add_u32 s22, s22, 4096")
    e(f"    buffer_store_dword v{g.vT+3}, v1, s[16:19], s22 offen")
    e("K5_END:")
    kend(name, g.vend)
    return name

def gen_k6():
    name = KNAME
    kstart(name)
    e("    s_cmp_ge_u32 s2, 16")
    e("    s_cbranch_scc1 K6_END")
    kload(4, "out"); kload(6, "ws")
    e("    s_waitcnt lgkmcnt(0)")
    srd(8, 4, 8192)
    srd(12, 6, WS_SIZE)
    e("    s_lshl_b32 s3, s2, 8")
    e("    v_add_u32 v1, s3, v0")
    e("    v_lshrrev_b32 v2, 10, v1")
    e("    v_bfe_u32 v3, v1, 9, 1")
    e("    v_and_b32 v4, 511, v1")
    e("    v_lshlrev_b32 v2, 11, v2")
    e("    v_lshlrev_b32 v3, 17, v3")
    e("    v_lshlrev_b32 v4, 2, v4")
    e("    v_add_u32 v2, v2, v3")
    e("    v_add_u32 v2, v2, v4")
    e(f"    s_mov_b32 s16, {WS_OUTP}")
    for rc in range(16):
        e(f"    buffer_load_dword v{8+rc}, v2, s[12:15], s16 offen")
        e(f"    s_add_u32 s16, s16, 8192")
    e("    s_waitcnt vmcnt(0)")
    e("    v_add_f32 v5, v8, v9")
    for rc in range(2, 16):
        e(f"    v_add_f32 v5, v5, v{8+rc}")
    e("    v_cvt_pk_bf16_f32 v5, v5, v5")
    e("    v_lshlrev_b32 v1, 1, v1")
    e("    buffer_store_short v5, v1, s[8:11], 0 offen")
    e("K6_END:")
    kend(name, 32)
    return name

import re
def fix_hazards(lines):
    for ln in lines:
        m = re.search(r"buffer_\S+ .*offset:(\d+)", ln)
        assert not (m and int(m.group(1)) >= 4096), "MUBUF offset too large: " + ln
    res = []
    trans = ("v_exp_f32", "v_rcp_f32", "v_rsq_f32", "v_log_f32", "v_sqrt_f32")
    for i, ln in enumerate(lines):
        res.append(ln)
        t = ln.strip().split()
        if t and t[0] in trans:
            d = t[1].rstrip(",")
            nxt = lines[i+1].strip() if i+1 < len(lines) else ""
            if re.search(r"\b" + d + r"\b", nxt) and nxt.startswith("v_"):
                res.append("    s_nop 0")
    return res

def main():
    hdr = open("concat_heads__sliding_block_cached__compressed_kv_cla__decode.s.ref").read().split("\n")
    hdr = [l for l in hdr if l.startswith(";") and "@launch" not in l]
    launches = [
        ("k1_qproj_kernel", 256, 32768),
        ("k2_qabs_kernel", 144, 0),] if "k1k2" in EXP else [("k12_q_kernel", 160, 136192)]
    launches += [
        ("k3_attn_kernel", 256, 163840),
        ("k4_comb_kernel", 320, 36864),
        ("k5_oproj_kernel", 128, 36864),
        (KNAME, 16, 0),
    ]
    out = list(hdr)
    for n, gx, lds in launches:
        bs = 512 if n == "k3_attn_kernel" else 256
        out.append(f"; @launch kernel={n} grid=({gx},1,1) block=({bs},1,1) lds={lds}")
    out.append('.amdgcn_target "amdgcn-amd-amdhsa--gfx950"')
    gen_k1(); gen_k2(); gen_k12(); gen_k3(); gen_k4(); gen_k5(); gen_k6()
    out += fix_hazards(L)
    dst = sys.argv[1] if len(sys.argv) > 1 else "concat_heads__sliding_block_cached__compressed_kv_cla__decode.s"
    open(dst, "w").write("\n".join(out) + "\n")

if __name__ == "__main__":
    main()
```

```python
import sys, struct

L = []
EXP = sys.argv[2] if len(sys.argv) > 2 else ''
def e(s=""):
    L.append(s)
def c(s):
    L.append("    ; " + s)

KNAME = "concat_heads__sliding_block_cached__compressed_kv_cla__decode_kernel"

KA = dict(A_x=0, A_k=8, A_v=16, A_wq=24, A_wo=32, B_x=40, B_ckv=48, B_wq=56, B_wuk=64, B_wuv=72, B_wo=80, out=88, dbg=96, ws=104)

WS_QA   = 0x000000
WS_QP   = 0x800000
WS_QABS = 0x010000
WS_BSTAT= 0x030000
WS_ASTAT= 0x038000
WS_OA   = 0x040000
WS_CTXP = 0x050000
WS_OUTP = 0x0D0000
WS_OUTP2= 0x900000
WS_APART= 0x200000
WS_BPART= 0x400000
WS_SIZE = 0x10000000

SCALE_LOG2E = 0.08838834764831845 * 1.4426950408889634

def f32hex(x):
    return "0x%08x" % struct.unpack("<I", struct.pack("<f", x))[0]

def kstart(name):
    e(".text")
    e(f".globl {name}")
    e(".p2align 8")
    e(f".type {name},@function")
    e(f"{name}:")

def kend(name, vgpr, sgpr=96, accum=None):
    if accum is None:
        accum = (vgpr + 3) // 4 * 4
    e("    s_endpgm")
    e('.section .rodata,"a"')
    e(".p2align 6")
    e(f".amdhsa_kernel {name}")
    e(f"  .amdhsa_next_free_vgpr {vgpr}")
    e(f"  .amdhsa_next_free_sgpr {sgpr}")
    e(f"  .amdhsa_accum_offset {accum}")
    e("  .amdhsa_group_segment_fixed_size 0")
    e("  .amdhsa_kernarg_size 112")
    e("  .amdhsa_user_sgpr_count 2")
    e("  .amdhsa_user_sgpr_kernarg_segment_ptr 1")
    e("  .amdhsa_system_sgpr_workgroup_id_x 1")
    e(".end_amdhsa_kernel")

def srd(sd, sp, nbytes):
    e(f"    s_mov_b32 s{sd}, s{sp}")
    e(f"    s_mov_b32 s{sd+1}, s{sp+1}")
    e(f"    s_mov_b32 s{sd+2}, {nbytes:#x}")
    e(f"    s_mov_b32 s{sd+3}, 0x00020000")

def vr(a, n=1):
    return f"v{a}" if n == 1 else f"v[{a}:{a+n-1}]"

STAMP_N = [0]
def stamp(sreg):
    if "stamp" not in EXP: return
    n = STAMP_N[0]; STAMP_N[0] += 1
    e(f"    s_memtime s[{sreg}:{sreg+1}]")
    e("    s_waitcnt lgkmcnt(0)")
    e(f"    s_mov_b32 s{60+n}, s{sreg}")
def lstamp():
    if "lstamp" not in EXP: return
    n = STAMP_N[0]; STAMP_N[0] += 1
    e(f"    s_memtime s[56:57]")
    e("    s_waitcnt lgkmcnt(0)")
    e("    s_cmp_eq_u32 s26, 5")
    e(f"    s_cselect_b32 s{60+n}, s56, s{60+n}")
def stamp_flush(srdreg, vtmp):
    if "stamp" not in EXP: return
    n = STAMP_N[0]
    e(f"    s_lshl_b32 s58, s2, 6")
    e(f"    s_add_u32 s58, s58, 0x1000000")
    e(f"    v_mov_b32 v{vtmp+1}, 0")
    for i in range(n):
        e(f"    v_mov_b32 v{vtmp}, s{60+i}")
        e(f"    buffer_store_dword v{vtmp}, v{vtmp+1}, s[{srdreg}:{srdreg+3}], s58 offen offset:{4*i}")
    STAMP_N[0] = 0

def kload(sd, name):
    e(f"    s_load_dwordx2 s[{sd}:{sd+1}], s[0:1], {KA[name]}")

class RowGemv:
    def __init__(self, LPR, NSTEP, vbase):
        self.LPR, self.NSTEP = LPR, NSTEP
        self.RPS = 256 // LPR
        self.NC = LPR * 8
        self.vW = vbase
        self.vX = self.vW + NSTEP * 4
        self.vAcc = self.vX + NSTEP * 4
        self.vT = self.vAcc + 32
        self.vend = self.vT + 4
    def issue(self, sW, vWoff, stepbytes, ssoff):
        c("rowgemv: issue W loads")
        for it in range(self.NSTEP):
            if it == 0:
                e(f"    buffer_load_dwordx4 {vr(self.vW,4)}, v{vWoff}, s[{sW}:{sW+3}], 0 offen")
            else:
                e(f"    s_mov_b32 s{ssoff}, {it*stepbytes:#x}")
                e(f"    buffer_load_dwordx4 {vr(self.vW+4*it,4)}, v{vWoff}, s[{sW}:{sW+3}], s{ssoff} offen")
    def compute(self, XOFF, REDOFF, vtid):
        LPR, NSTEP, RPS, NC = self.LPR, self.NSTEP, self.RPS, self.NC
        t0, t1, t2, t3 = self.vT, self.vT+1, self.vT+2, self.vT+3
        sh = {8:3, 16:4}[LPR]
        c("rowgemv: read x from LDS")
        e(f"    v_lshrrev_b32 v{t0}, {sh}, v{vtid}")
        e(f"    v_lshlrev_b32 v{t1}, 4, v{t0}")
        for it in range(NSTEP):
            e(f"    ds_read_b128 {vr(self.vX+4*it,4)}, v{t1} offset:{XOFF + it*RPS*16}")
        for j in range(32):
            e(f"    v_mov_b32 v{self.vAcc+j}, 0")
        e("    s_waitcnt lgkmcnt(0)")
        for it in range(NSTEP):
            e(f"    s_waitcnt vmcnt({NSTEP-1-it})")
            for j in range(4):
                w = self.vW + 4*it + j
                e(f"    v_lshlrev_b32 v{t2}, 16, v{w}")
                e(f"    v_and_b32 v{t3}, 0xffff0000, v{w}")
                for b in range(4):
                    e(f"    v_fmac_f32 v{self.vAcc+8*b+2*j}, v{self.vX+4*it+b}, v{t2}")
                    e(f"    v_fmac_f32 v{self.vAcc+8*b+2*j+1}, v{self.vX+4*it+b}, v{t3}")
        c("rowgemv: cross-row-group reduction through LDS")
        e(f"    v_and_b32 v{t1}, {LPR-1}, v{vtid}")
        e(f"    v_lshlrev_b32 v{t1}, 5, v{t1}")
        e(f"    v_mul_u32_u24 v{t2}, {16*NC}, v{t0}")
        e(f"    v_add_u32 v{t1}, v{t1}, v{t2}")
        for b in range(4):
            e(f"    ds_write_b128 v{t1}, {vr(self.vAcc+8*b,4)} offset:{REDOFF + b*NC*4}")
            e(f"    ds_write_b128 v{t1}, {vr(self.vAcc+8*b+4,4)} offset:{REDOFF + b*NC*4 + 16}")
        e("    s_waitcnt lgkmcnt(0)")
        e("    s_barrier")
        e(f"    v_lshlrev_b32 v{t1}, 2, v{vtid}")
        nout = (4*NC)//256
        for o in range(nout):
            for g in range(RPS):
                e(f"    ds_read_b32 v{self.vX+o*RPS+g}, v{t1} offset:{REDOFF + o*1024 + g*16*NC}")
        e("    s_waitcnt lgkmcnt(0)")
        for o in range(nout):
            dst = t2 + o
            e(f"    v_add_f32 v{dst}, v{self.vX+o*RPS}, v{self.vX+o*RPS+1}")
            for g in range(2, RPS):
                e(f"    v_add_f32 v{dst}, v{dst}, v{self.vX+o*RPS+g}")

def gen_k1():
    name = "k1_qproj_kernel"
    kstart(name)
    XOFF = 32768
    e("    s_cmp_ge_u32 s2, 256")
    e("    s_cbranch_scc1 K1_END")
    kload(4, "A_x"); kload(6, "A_wq"); kload(8, "B_x"); kload(10, "B_wq"); kload(14, "ws")
    e("    v_lshrrev_b32 v4, 6, v0")
    e("    v_and_b32 v1, 63, v0")
    e("    v_readfirstlane_b32 s18, v4")
    e("    v_and_b32 v2, 15, v1")
    e("    v_lshrrev_b32 v3, 4, v1")
    e("    s_lshr_b32 s19, s2, 7")
    e("    s_bfe_u32 s16, s2, 0x50002")
    e("    s_and_b32 s17, s2, 3")
    e("    s_cmp_eq_u32 s19, 1")
    e("    s_waitcnt lgkmcnt(0)")
    e("    s_cselect_b32 s20, s10, s6")
    e("    s_cselect_b32 s21, s11, s7")
    e("    s_mov_b32 s22, 0x400000")
    e("    s_mov_b32 s23, 0x00020000")
    e("    s_cselect_b32 s24, s8, s4")
    e("    s_cselect_b32 s25, s9, s5")
    e("    s_mov_b32 s26, 4096")
    e("    s_mov_b32 s27, 0x00020000")
    srd(32, 14, WS_SIZE)
    c("W -> LDS: wave w rows [32w,32w+32) of the 128-row chunk; voffset(u) = rr*8192 + ((p ^ ((4u+rr)<<1))<<4)")
    for u in range(2):
        e(f"    v_add_u32 v7, {4*u}, v3")
        e(f"    v_lshlrev_b32 v7, 1, v7")
        e(f"    v_xor_b32 v7, v7, v2")
        e(f"    v_lshlrev_b32 v7, 4, v7")
        e(f"    v_lshl_add_u32 v{10+u}, v3, 13, v7")
    e("    s_lshl_b32 s36, s18, 13")
    e("    s_lshl_b32 s37, s18, 18")
    e("    s_lshl_b32 s38, s16, 8")
    e("    s_add_u32 s37, s37, s38")
    e("    s_lshl_b32 s38, s17, 20")
    e("    s_add_u32 s37, s37, s38")
    for i in range(8):
        e("    s_mov_b32 m0, s36")
        e("    s_add_u32 s36, s36, 1024")
        e(f"    buffer_load_dwordx4 v{10+(i&1)}, s[20:23], s37 offen lds")
        e("    s_add_u32 s37, s37, 32768")
    c("x operand straight from global: x[b=l&3][128kc + 32ks + 8g ..]")
    e("    v_and_b32 v4, 3, v1")
    e("    v_lshlrev_b32 v4, 10, v4")
    e("    v_lshl_add_u32 v4, v3, 4, v4")
    e("    s_lshl_b32 s36, s17, 8")
    for ks in range(4):
        e(f"    buffer_load_dwordx4 {vr(32+4*ks,4)}, v4, s[24:27], s36 offen offset:{ks*64}")
    c("tr read addresses (r = 8g + 4sec + (i>>2))")
    e("    v_lshrrev_b32 v8, 2, v2")
    e("    v_lshlrev_b32 v9, 1, v8")
    e("    v_lshl_add_u32 v8, v3, 3, v8")
    e("    v_bfe_u32 v12, v2, 1, 1")
    e("    v_xor_b32 v9, v9, v12")
    e("    s_lshl_b32 s36, s18, 2")
    e("    v_xor_b32 v9, s36, v9")
    e("    v_lshlrev_b32 v9, 4, v9")
    e("    v_lshl_add_u32 v8, v8, 8, v9")
    e("    v_and_b32 v9, 1, v2")
    e("    v_lshl_add_u32 v8, v9, 3, v8")
    e("    v_xor_b32 v9, 32, v8")
    e("    v_xor_b32 v5, 128, v8")
    e("    v_add_u32 v5, 1024, v5")
    e("    v_xor_b32 v6, 32, v5")
    e("    s_waitcnt vmcnt(0)")
    e("    s_barrier")
    for ks in range(4):
        e(f"    ds_read_b64_tr_b16 {vr(48+8*ks,2)}, v8 offset:{ks*8192}")
        e(f"    ds_read_b64_tr_b16 {vr(50+8*ks,2)}, v5 offset:{ks*8192}")
        e(f"    ds_read_b64_tr_b16 {vr(52+8*ks,2)}, v9 offset:{ks*8192}")
        e(f"    ds_read_b64_tr_b16 {vr(54+8*ks,2)}, v6 offset:{ks*8192}")
    e("    s_waitcnt lgkmcnt(0)")
    for ks in range(4):
        for tt in range(2):
            cc = "0" if ks == 0 else vr(24+4*tt,4)
            e(f"    v_mfma_f32_16x16x32_bf16 {vr(24+4*tt,4)}, {vr(48+8*ks+4*tt,4)}, {vr(32+4*ks,4)}, {cc}")
    c("store QP[kc][mat][b=l15][128h + 32w + 16tt + 4g ..] f32")
    e("    v_lshlrev_b32 v5, 14, v2")
    e("    v_lshl_add_u32 v5, v3, 4, v5")
    e("    s_lshl_b32 s36, s17, 17")
    e("    s_lshl_b32 s37, s19, 16")
    e("    s_add_u32 s36, s36, s37")
    e("    s_lshl_b32 s37, s16, 9")
    e("    s_add_u32 s36, s36, s37")
    e("    s_lshl_b32 s37, s18, 7")
    e("    s_add_u32 s36, s36, s37")
    e(f"    s_add_u32 s36, s36, {WS_QP}")
    e("    v_cmp_gt_u32 vcc, 4, v2")
    e("    s_and_saveexec_b64 s[38:39], vcc")
    e("    buffer_store_dwordx4 v[24:27], v5, s[32:35], s36 offen")
    e("    buffer_store_dwordx4 v[28:31], v5, s[32:35], s36 offen offset:64")
    e("K1_END:")
    kend(name, 80)
    return name

def gen_k2():
    name = "k2_qabs_kernel"
    kstart(name)
    e("    s_cmp_ge_u32 s2, 144")
    e("    s_cbranch_scc1 K2_END")
    k2stamp = "k2stamp" in EXP
    def st(n):
        if k2stamp:
            e("    s_memtime s[56:57]"); e("    s_waitcnt lgkmcnt(0)"); e(f"    s_mov_b32 s{60+n}, s56")
    st(0)
    kload(4, "B_wuk"); kload(6, "ws")
    e("    v_lshrrev_b32 v4, 6, v0")
    e("    v_and_b32 v1, 63, v0")
    e("    v_readfirstlane_b32 s18, v4")
    e("    v_and_b32 v2, 15, v1")
    e("    v_lshrrev_b32 v3, 4, v1")
    e("    s_lshr_b32 s16, s2, 2")
    e("    s_and_b32 s17, s2, 3")
    e("    s_waitcnt lgkmcnt(0)")
    srd(8, 4, 4194304)
    srd(12, 6, WS_SIZE)
    st(1)
    e("    s_cmp_ge_u32 s2, 128")
    e("    s_cbranch_scc1 K2_A")
    c("A operand loads: c = 128cq + 32w + 16T + l15 ; byte = c*8192 + h*256 + kk*64 + g*16")
    e("    v_lshlrev_b32 v5, 13, v2")
    e("    v_lshl_add_u32 v5, v3, 4, v5")
    e("    s_lshl_b32 s20, s17, 20")
    e("    s_lshl_b32 s21, s18, 18")
    e("    s_add_u32 s20, s20, s21")
    e("    s_lshl_b32 s21, s16, 8")
    e("    s_add_u32 s20, s20, s21")
    e("    s_add_u32 s21, s20, 0x20000")
    for T in range(2):
        for kk in range(4):
            e(f"    buffer_load_dwordx4 {vr(32+16*T+4*kk,4)}, v5, s[8:11], s{20+T} offen offset:{kk*64}")
    c("B operand: sum of the 4 K-chunk partials of q_B[b=l&3][128h + 32kk + 8g ..+7] -> bf16")
    e("    v_and_b32 v6, 3, v1")
    e("    v_lshlrev_b32 v6, 14, v6")
    e("    v_lshl_add_u32 v6, v3, 5, v6")
    e("    s_lshl_b32 s22, s16, 9")
    e(f"    s_add_u32 s22, s22, {WS_QP + 65536}")
    for kc in range(4):
        for kk in range(4):
            e(f"    buffer_load_dwordx4 {vr(64+32*kc+8*kk,4)}, v6, s[12:15], s22 offen offset:{kk*128}")
            e(f"    buffer_load_dwordx4 {vr(68+32*kc+8*kk,4)}, v6, s[12:15], s22 offen offset:{kk*128+16}")
        if kc < 3:
            e("    s_add_u32 s22, s22, 131072")
    st(2)
    e("    s_waitcnt vmcnt(0)")
    st(3)
    for j in range(0,32,2):
        e(f"    v_pk_add_f32 {vr(64+j,2)}, {vr(64+j,2)}, {vr(96+j,2)}")
        e(f"    v_pk_add_f32 {vr(128+j,2)}, {vr(128+j,2)}, {vr(160+j,2)}")
        e(f"    v_pk_add_f32 {vr(64+j,2)}, {vr(64+j,2)}, {vr(128+j,2)}")
        e(f"    v_cvt_pk_bf16_f32 v{96+j//2}, v{64+j}, v{65+j}")
    e("    s_nop 1")
    for T in range(2):
        for kk in range(4):
            cc = "0" if kk == 0 else vr(24+4*T,4)
            e(f"    v_mfma_f32_16x16x32_bf16 {vr(24+4*T,4)}, {vr(32+16*T+4*kk,4)}, {vr(96+4*kk,4)}, {cc}")
    e(f"    s_mov_b32 s23, {f32hex(SCALE_LOG2E)}")
    c("store in fragment layout: QF[b][w=cq][kk][lane=hf*32+h][8] ; c_local = 32w' + 16T + 4g + r : kk = 2w'+T, hf = g>>1, j = 4(g&1)+r")
    e("    v_lshlrev_b32 v5, 15, v2")
    e("    v_lshrrev_b32 v6, 1, v3")
    e("    v_lshl_add_u32 v5, v6, 9, v5")
    e("    v_and_b32 v6, 1, v3")
    e("    v_lshl_add_u32 v5, v6, 3, v5")
    e("    s_lshl_b32 s24, s17, 13")
    e("    s_lshl_b32 s25, s18, 11")
    e("    s_add_u32 s24, s24, s25")
    e("    s_lshl_b32 s25, s16, 4")
    e("    s_add_u32 s24, s24, s25")
    e(f"    s_add_u32 s24, s24, {WS_QABS}")
    for T in range(2):
        for r in range(4):
            e(f"    v_mul_f32 v{24+4*T+r}, s23, v{24+4*T+r}")
        e(f"    v_cvt_pk_bf16_f32 v{16+2*T}, v{24+4*T}, v{25+4*T}")
        e(f"    v_cvt_pk_bf16_f32 v{17+2*T}, v{26+4*T}, v{27+4*T}")
    e("    v_cmp_gt_u32 vcc, 4, v2")
    e("    s_and_saveexec_b64 s[26:27], vcc")
    e("    buffer_store_dwordx2 v[16:17], v5, s[12:15], s24 offen")
    e("    buffer_store_dwordx2 v[18:19], v5, s[12:15], s24 offen offset:1024")
    if k2stamp:
        st(4)
        e("    s_waitcnt vmcnt(0)")
        st(5)
        e("    s_mov_b64 exec, -1")
        e("    s_lshl_b32 s58, s2, 6")
        e("    s_add_u32 s58, s58, 0x1000000")
        e("    v_mov_b32 v7, 0")
        for i in range(6):
            e(f"    v_mov_b32 v6, s{60+i}")
            e(f"    buffer_store_dword v6, v7, s[12:15], s58 offen offset:{4*i}")
    e("    s_endpgm")
    e("K2_A:")
    c("finalize q_A: thread handles 4 consecutive outputs")
    e("    s_sub_u32 s16, s2, 128")
    e("    s_lshl_b32 s16, s16, 12")
    e("    v_lshl_add_u32 v5, v0, 4, s16")
    e(f"    s_mov_b32 s22, {WS_QP}")
    for kc in range(4):
        e(f"    buffer_load_dwordx4 {vr(16+4*kc,4)}, v5, s[12:15], s22 offen")
        if kc < 3:
            e("    s_add_u32 s22, s22, 131072")
    e("    s_waitcnt vmcnt(0)")
    for j in range(2):
        e(f"    v_pk_add_f32 {vr(16+2*j,2)}, {vr(16+2*j,2)}, {vr(20+2*j,2)}")
        e(f"    v_pk_add_f32 {vr(24+2*j,2)}, {vr(24+2*j,2)}, {vr(28+2*j,2)}")
        e(f"    v_pk_add_f32 {vr(16+2*j,2)}, {vr(16+2*j,2)}, {vr(24+2*j,2)}")
        e(f"    v_cvt_pk_bf16_f32 v{8+j}, v{16+2*j}, v{17+2*j}")
    e("    v_lshrrev_b32 v5, 1, v5")
    e(f"    s_mov_b32 s22, {WS_QA}")
    e("    buffer_store_dwordx2 v[8:9], v5, s[12:15], s22 offen")
    e("K2_END:")
    kend(name, 192)
    return name

def gen_k12():
    name = "k12_q_kernel"
    kstart(name)
    XOFF, QOFF = 131072, 135168
    kst = "k12st_" in EXP
    def st(n):
        if kst:
            e("    s_memtime s[56:57]"); e("    s_waitcnt lgkmcnt(0)"); e(f"    s_mov_b32 s{60+n}, s56")
    e("    s_cmp_ge_u32 s2, 160")
    e("    s_cbranch_scc1 K12_END")
    st(0)
    kload(4, "A_x"); kload(6, "A_wq"); kload(8, "B_x"); kload(10, "B_wq"); kload(12, "B_wuk"); kload(14, "ws")
    e("    v_lshrrev_b32 v4, 6, v0")
    e("    v_and_b32 v1, 63, v0")
    e("    v_readfirstlane_b32 s18, v4")
    e("    v_and_b32 v2, 15, v1")
    e("    v_lshrrev_b32 v3, 4, v1")
    e("    s_lshr_b32 s16, s2, 2")
    e("    s_and_b32 s17, s2, 3")
    e("    s_sub_u32 s19, s2, 128")
    e("    s_cmp_lt_u32 s2, 128")
    e("    s_cselect_b32 s16, s16, s19")
    e("    s_waitcnt lgkmcnt(0)")
    e("    s_cselect_b32 s20, s10, s6")
    e("    s_cselect_b32 s21, s11, s7")
    e("    s_mov_b32 s22, 0x400000")
    e("    s_mov_b32 s23, 0x00020000")
    e("    s_cselect_b32 s24, s8, s4")
    e("    s_cselect_b32 s25, s9, s5")
    e("    s_mov_b32 s26, 4096")
    e("    s_mov_b32 s27, 0x00020000")
    srd(28, 12, 4194304)
    srd(32, 14, WS_SIZE)
    st(1)
    c("x -> LDS (wave w loads x[b=w])")
    e("    v_lshlrev_b32 v4, 4, v1")
    e("    s_lshl_b32 s36, s18, 10")
    e(f"    s_add_u32 s37, s36, {XOFF}")
    e("    s_mov_b32 m0, s37")
    e("    s_nop 0")
    e("    buffer_load_dwordx4 v4, s[24:27], s36 offen lds")
    c("W -> LDS: wave w rows [128w,128w+128); voffset(u) = rr*8192 + ((p ^ ((4u+rr)<<1))<<4)")
    for u in range(2):
        e(f"    v_add_u32 v7, {4*u}, v3")
        e(f"    v_lshlrev_b32 v7, 1, v7")
        e(f"    v_xor_b32 v7, v7, v2")
        e(f"    v_lshlrev_b32 v7, 4, v7")
        e(f"    v_lshl_add_u32 v{10+u}, v3, 13, v7")
    e("    s_lshl_b32 s36, s18, 15")
    e("    s_lshl_b32 s37, s18, 20")
    e("    s_lshl_b32 s38, s16, 8")
    e("    s_add_u32 s37, s37, s38")
    e("    s_mov_b32 s38, 0")
    e("K12_DMA:")
    for u in range(2):
        e("    s_mov_b32 m0, s36")
        e("    s_add_u32 s36, s36, 1024")
        e(f"    buffer_load_dwordx4 v{10+u}, s[20:23], s37 offen lds")
        e("    s_add_u32 s37, s37, 32768")
    e("    s_add_u32 s38, s38, 1")
    e("    s_cmp_lt_u32 s38, 16")
    e("    s_cbranch_scc1 K12_DMA")
    st(2)
    c("B only: w_uk A-operand loads: c = 128cq + 32w + 16T + l15 ; byte = c*8192 + h*256 + kk*64 + g*16")
    e("    s_cmp_lt_u32 s2, 128")
    e("    s_cbranch_scc0 K12_NOUK")
    e("    v_lshlrev_b32 v5, 13, v2")
    e("    v_lshl_add_u32 v5, v3, 4, v5")
    e("    s_lshl_b32 s36, s17, 20")
    e("    s_lshl_b32 s37, s18, 18")
    e("    s_add_u32 s36, s36, s37")
    e("    s_lshl_b32 s37, s16, 8")
    e("    s_add_u32 s36, s36, s37")
    e("    s_add_u32 s37, s36, 0x20000")
    for T in range(2):
        for kk in range(4):
            e(f"    buffer_load_dwordx4 {vr(32+16*T+4*kk,4)}, v5, s[28:31], s{36+T} offen offset:{kk*64}")
    e("K12_NOUK:")
    c("LDS read addresses")
    e("    v_and_b32 v4, 3, v1")
    e("    v_lshlrev_b32 v4, 10, v4")
    e("    v_lshl_add_u32 v4, v3, 4, v4")
    e(f"    v_add_u32 v4, {XOFF}, v4")
    e("    v_lshrrev_b32 v8, 2, v2")
    e("    v_lshlrev_b32 v9, 1, v8")
    e("    v_lshl_add_u32 v8, v3, 3, v8")
    e("    v_bfe_u32 v12, v2, 1, 1")
    e("    v_xor_b32 v9, v9, v12")
    e("    s_lshl_b32 s36, s18, 2")
    e("    v_xor_b32 v9, s36, v9")
    e("    v_lshlrev_b32 v9, 4, v9")
    e("    v_lshl_add_u32 v8, v8, 8, v9")
    e("    v_and_b32 v9, 1, v2")
    e("    v_lshl_add_u32 v8, v9, 3, v8")
    e("    v_xor_b32 v9, 32, v8")
    e("    v_xor_b32 v5, 128, v8")
    e("    v_add_u32 v5, 1024, v5")
    e("    v_xor_b32 v6, 32, v5")
    e("    v_mov_b64 v[24:25], 0")
    e("    v_mov_b64 v[26:27], 0")
    e("    v_mov_b64 v[28:29], 0")
    e("    v_mov_b64 v[30:31], 0")
    e("    s_mov_b32 s38, 0")
    st(3)
    e("    s_waitcnt vmcnt(0)")
    e("    s_barrier")
    st(4)
    e("K12_MM:")
    e("    ds_read_b128 v[12:15], v4")
    e("    ds_read_b64_tr_b16 v[16:17], v8")
    e("    ds_read_b64_tr_b16 v[18:19], v5")
    e("    ds_read_b64_tr_b16 v[20:21], v9")
    e("    ds_read_b64_tr_b16 v[22:23], v6")
    e("    v_add_u32 v4, 64, v4")
    e("    v_add_u32 v8, 0x2000, v8")
    e("    v_add_u32 v9, 0x2000, v9")
    e("    v_add_u32 v5, 0x2000, v5")
    e("    v_add_u32 v6, 0x2000, v6")
    e("    s_add_u32 s38, s38, 1")
    e("    s_cmp_lt_u32 s38, 16")
    e("    s_waitcnt lgkmcnt(0)")
    e("    v_mfma_f32_16x16x32_bf16 v[24:27], v[16:19], v[12:15], v[24:27]")
    e("    v_mfma_f32_16x16x32_bf16 v[28:31], v[20:23], v[12:15], v[28:31]")
    e("    s_cbranch_scc1 K12_MM")
    st(5)
    e("    s_nop 7")
    e("    v_cvt_pk_bf16_f32 v16, v24, v25")
    e("    v_cvt_pk_bf16_f32 v17, v26, v27")
    e("    v_cvt_pk_bf16_f32 v18, v28, v29")
    e("    v_cvt_pk_bf16_f32 v19, v30, v31")
    e("    v_cmp_gt_u32 vcc, 4, v2")
    e("    s_cmp_lt_u32 s2, 128")
    e("    s_cbranch_scc1 K12_B2")
    c("A: store qA[b=l15][h*128 + 32w + 16tt + 4g ..]")
    e("    v_lshlrev_b32 v5, 13, v2")
    e("    v_lshl_add_u32 v5, v3, 3, v5")
    e("    s_lshl_b32 s36, s16, 8")
    e("    s_lshl_b32 s37, s18, 6")
    e("    s_add_u32 s36, s36, s37")
    e("    s_and_saveexec_b64 s[38:39], vcc")
    e(f"    buffer_store_dwordx2 v[16:17], v5, s[32:35], s36 offen offset:{WS_QA}")
    e(f"    buffer_store_dwordx2 v[18:19], v5, s[32:35], s36 offen offset:{WS_QA+32}")
    e("    s_endpgm")
    e("K12_B2:")
    c("B: q -> LDS bf16 [b][128]")
    e("    v_lshlrev_b32 v5, 8, v2")
    e("    v_lshl_add_u32 v5, v3, 3, v5")
    e("    s_lshl_b32 s37, s18, 6")
    e(f"    s_add_u32 s37, s37, {QOFF}")
    e("    v_add_u32 v5, s37, v5")
    e("    s_and_saveexec_b64 s[38:39], vcc")
    e("    ds_write_b64 v5, v[16:17]")
    e("    ds_write_b64 v5, v[18:19] offset:32")
    e("    s_mov_b64 exec, s[38:39]")
    e("    v_and_b32 v4, 3, v1")
    e("    v_lshlrev_b32 v4, 8, v4")
    e("    v_lshl_add_u32 v4, v3, 4, v4")
    e(f"    v_add_u32 v4, {QOFF}, v4")
    e("    s_waitcnt lgkmcnt(0)")
    e("    s_barrier")
    for kk in range(4):
        e(f"    ds_read_b128 {vr(64+4*kk,4)}, v4 offset:{kk*64}")
    e("    s_waitcnt lgkmcnt(0)")
    for T in range(2):
        for kk in range(4):
            cc = "0" if kk == 0 else vr(24+4*T,4)
            e(f"    v_mfma_f32_16x16x32_bf16 {vr(24+4*T,4)}, {vr(32+16*T+4*kk,4)}, {vr(64+4*kk,4)}, {cc}")
    e(f"    s_mov_b32 s36, {f32hex(SCALE_LOG2E)}")
    c("store in fragment layout")
    e("    v_lshlrev_b32 v5, 15, v2")
    e("    v_lshrrev_b32 v6, 1, v3")
    e("    v_lshl_add_u32 v5, v6, 9, v5")
    e("    v_and_b32 v6, 1, v3")
    e("    v_lshl_add_u32 v5, v6, 3, v5")
    e("    s_lshl_b32 s24, s17, 13")
    e("    s_lshl_b32 s25, s18, 11")
    e("    s_add_u32 s24, s24, s25")
    e("    s_lshl_b32 s25, s16, 4")
    e("    s_add_u32 s24, s24, s25")
    e(f"    s_add_u32 s24, s24, {WS_QABS}")
    for T in range(2):
        for r in range(4):
            e(f"    v_mul_f32 v{24+4*T+r}, s36, v{24+4*T+r}")
        e(f"    v_cvt_pk_bf16_f32 v{16+2*T}, v{24+4*T}, v{25+4*T}")
        e(f"    v_cvt_pk_bf16_f32 v{17+2*T}, v{26+4*T}, v{27+4*T}")
    e("    s_and_saveexec_b64 s[38:39], vcc")
    e("    buffer_store_dwordx2 v[16:17], v5, s[32:35], s24 offen")
    e("    buffer_store_dwordx2 v[18:19], v5, s[32:35], s24 offen offset:1024")
    if kst:
        e("    s_mov_b64 exec, -1")
        st(6)
        e("    s_lshl_b32 s58, s2, 6")
        e("    s_add_u32 s58, s58, 0x1000000")
        e("    v_mov_b32 v7, 0")
        for i in range(7):
            e(f"    v_mov_b32 v6, s{60+i}")
            e(f"    buffer_store_dword v6, v7, s[32:35], s58 offen offset:{4*i}")
    e("K12_END:")
    kend(name, 80)
    return name

def gen_k3():
    name = "k3_attn_kernel"
    kstart(name)
    e("    s_cmp_ge_u32 s2, 256")
    e("    s_cbranch_scc1 K3_END")
    e("    s_cmp_ge_u32 s2, 128")
    e("    s_cbranch_scc1 " + ("K3_END" if "noA" in EXP else "K3_A"))
    if "noB" in EXP:
        e("    s_endpgm")
    stamp(56)
    kload(4, "B_ckv"); kload(6, "ws")
    e("    v_lshrrev_b32 v4, 6, v0")
    e("    v_and_b32 v1, 63, v0")
    e("    v_readfirstlane_b32 s29, v4")
    e("    s_lshr_b32 s16, s2, 5")
    e("    s_and_b32 s17, s2, 31")
    e("    v_and_b32 v2, 31, v1")
    e("    v_lshrrev_b32 v3, 5, v1")
    e("    s_and_b32 s18, s29, 3")
    e("    s_lshr_b32 s30, s29, 2")
    e("    s_waitcnt lgkmcnt(0)")
    srd(8, 4, 33554432)
    srd(12, 6, WS_SIZE)
    vDma, vRdA, vRdT, vEx, vm, vl, val = 8, 12, 20, 28, 29, 174, 30
    vQ, vS, vP, vT, vAcc = 32, 64, 96, 104, 176
    vA2, vT2 = 240, 248
    c("Q operand loads: qabs[b][head=l31][128w + 16kk + 8hf ..]")
    e("    v_lshlrev_b32 v4, 4, v1")
    e("    s_lshl_b32 s20, s16, 15")
    e("    s_lshl_b32 s21, s18, 13")
    e("    s_add_u32 s20, s20, s21")
    e(f"    s_add_u32 s20, s20, {WS_QABS}")
    for kk in range(4):
        e(f"    buffer_load_dwordx4 {vr(vQ+4*kk,4)}, v4, s[12:15], s20 offen offset:{kk*1024}")
    e("    s_add_u32 s21, s20, 4096")
    for kk in range(4,8):
        e(f"    buffer_load_dwordx4 {vr(vQ+4*kk,4)}, v4, s[12:15], s21 offen offset:{(kk-4)*1024}")
    c("DMA voffsets: rr*1024 + ((p ^ (rr<<2) ^ u)*16)")
    e("    v_lshrrev_b32 v4, 4, v1")
    e("    v_and_b32 v5, 15, v1")
    e("    v_lshlrev_b32 v6, 2, v4")
    e("    v_xor_b32 v5, v5, v6")
    e("    v_lshlrev_b32 v6, 10, v4")
    for u in range(4):
        e(f"    v_xor_b32 v7, {u}, v5")
        e(f"    v_lshl_add_u32 v{vDma+u}, v7, 4, v6")
    c("global base soffset s19 (tile g) ; LDS wave base s22 = (g*8+w)*8192")
    e("    s_lshl_b32 s19, s16, 23")
    e("    s_lshl_b32 s21, s17, 15")
    e("    s_add_u32 s19, s19, s21")
    e("    s_lshl_b32 s21, s18, 8")
    e("    s_add_u32 s19, s19, s21")
    e("    s_lshl_b32 s21, s30, 20")
    e("    s_add_u32 s19, s19, s21")
    e("    s_lshl_b32 s22, s30, 3")
    e("    s_add_u32 s22, s22, s18")
    e("    s_lshl_b32 s22, s22, 13")
    c("prologue DMA: tiles it=0,1 -> stages 0,1")
    e("    s_mov_b32 s23, s22")
    e("    s_mov_b32 s24, s19")
    e("    s_mov_b32 s26, 0")
    e("K3_BPRO:")
    for i in range(8):
        e(f"    s_mov_b32 m0, s23")
        e(f"    s_add_u32 s23, s23, 1024")
        e(f"    buffer_load_dwordx4 v{vDma+(i&3)}, s[8:11], s24 offen nt lds")
        e(f"    s_add_u32 s24, s24, 4096")
    e("    s_add_u32 s23, s23, 24576")
    e("    s_add_u32 s24, s24, 0x1f8000")
    e("    s_add_u32 s26, s26, 1")
    e("    s_cmp_lt_u32 s26, 2")
    e("    s_cbranch_scc1 K3_BPRO")
    c("GEMM1 read addresses: base + r*256 + ((hf ^ f(r))<<4), f(r)=((r&3)<<2)|((r>>2)&3)")
    e("    v_and_b32 v4, 3, v2")
    e("    v_lshlrev_b32 v4, 2, v4")
    e("    v_bfe_u32 v5, v2, 2, 2")
    e("    v_or_b32 v4, v4, v5")
    e("    v_xor_b32 v4, v4, v3")
    e("    v_lshlrev_b32 v4, 4, v4")
    e("    v_lshl_add_u32 v4, v2, 8, v4")
    e("    v_add_u32 v4, s22, v4")
    for kk in range(8):
        e(f"    v_xor_b32 v{vRdA+kk}, {kk<<5}, v4")
    c("tr read addresses")
    e("    v_and_b32 v4, 15, v1")
    e("    v_lshrrev_b32 v5, 2, v4")
    e("    v_bfe_u32 v6, v1, 4, 1")
    e("    v_lshlrev_b32 v6, 1, v6")
    e("    v_bfe_u32 v7, v4, 1, 1")
    e("    v_add_u32 v6, v6, v7")
    e("    v_lshlrev_b32 v7, 2, v5")
    e("    v_or_b32 v7, v7, v3")
    e("    v_xor_b32 v6, v6, v7")
    e("    v_lshlrev_b32 v6, 4, v6")
    e("    v_lshlrev_b32 v7, 2, v3")
    e("    v_add_u32 v7, v7, v5")
    e("    v_lshl_add_u32 v6, v7, 8, v6")
    e("    v_and_b32 v7, 1, v4")
    e("    v_lshl_add_u32 v6, v7, 3, v6")
    e("    v_add_u32 v6, s22, v6")
    for mt in range(4):
        e(f"    v_xor_b32 v{vRdT+2*mt}, {(mt<<6)}, v6")
        e(f"    v_xor_b32 v{vRdT+2*mt+1}, {(mt<<6)^32}, v6")
        e(f"    v_add_u32 v{vRdT+2*mt+1}, 2048, v{vRdT+2*mt+1}")
    c("exchange: read base vEx = 131072 + g*16384 + lane*16 ; own write address v4 = + w*4096")
    e("    s_lshl_b32 s25, s30, 14")
    e("    s_add_u32 s25, s25, 131072")
    e(f"    v_lshl_add_u32 v{vEx}, v1, 4, s25")
    e("    s_lshl_b32 s25, s18, 12")
    e(f"    v_add_u32 v4, s25, v{vEx}")
    if "warm" in EXP:
        c("dry pass over the loop + epilogue with EXEC=0 while the first tiles are in flight (instruction cache warm-up)")
        e("    s_mov_b64 exec, 0")
        e("    s_mov_b32 s26, 3")
        e("    s_branch K3_BLOOP")
        e("K3_BWARM_DONE:")
        e("    s_mov_b64 exec, -1")
    e(f"    v_mov_b32 v{vm}, 0xff7fffff")
    e(f"    v_mov_b32 v{vl}, 0")
    for j in range(0,64,2):
        e(f"    v_mov_b64 {vr(vAcc+j,2)}, 0")
    e("    s_mov_b32 s26, 0")
    stamp(56)
    e("K3_BLOOP:")
    e("    s_cbranch_execz K3_SW1")
    e("    s_waitcnt vmcnt(8)")
    e("K3_SW1:")
    e("    s_and_b32 s27, s26, 1")
    e("    s_lshl_b32 s27, s27, 15")
    for kk in range(8):
        e(f"    v_add_u32 v{vA2+kk}, s27, v{vRdA+kk}")
    for kk in range(8):
        e(f"    ds_read_b128 {vr(vT+4*kk,4)}, v{vA2+kk}")
    for kk in range(8):
        e(f"    v_add_u32 v{vT2+kk}, s27, v{vRdT+kk}")
    e("    s_waitcnt lgkmcnt(0)")
    for kk in range(8):
        cc = "0" if kk == 0 else vr(vS,16)
        e(f"    v_mfma_f32_32x32x16_bf16 {vr(vS,16)}, {vr(vT+4*kk,4)}, {vr(vQ+4*kk,4)}, {cc}")
    e("    s_nop 7")
    e("    s_nop 3")
    e("    s_cbranch_execz K3_SB1")
    e("    s_barrier")
    e("K3_SB1:")
    for q in range(4):
        e(f"    ds_write_b128 v4, {vr(vS+4*q,4)} offset:{q*1024}")
    e("    s_waitcnt lgkmcnt(0)")
    e("    s_cbranch_execz K3_SB2")
    e("    s_barrier")
    e("K3_SB2:")
    for w2 in range(4):
        for q in range(4):
            e(f"    ds_read_b128 {vr(vT+16*w2+4*q,4)}, v{vEx} offset:{w2*4096 + q*1024}")
    e("    s_waitcnt lgkmcnt(0)")
    for r in range(0,16,2):
        e(f"    v_pk_add_f32 {vr(vS+r,2)}, {vr(vT+r,2)}, {vr(vT+16+r,2)}")
        e(f"    v_pk_add_f32 {vr(vT+32+r,2)}, {vr(vT+32+r,2)}, {vr(vT+48+r,2)}")
        e(f"    v_pk_add_f32 {vr(vS+r,2)}, {vr(vS+r,2)}, {vr(vT+32+r,2)}")
    e(f"    v_max3_f32 v5, v{vS}, v{vS+1}, v{vS+2}")
    for r in range(3, 15, 2):
        e(f"    v_max3_f32 v5, v5, v{vS+r}, v{vS+r+1}")
    e(f"    v_max_f32 v5, v5, v{vS+15}")
    e("    v_mov_b32 v6, v5")
    e("    s_nop 1")
    e("    v_permlane32_swap_b32 v5, v6")
    e("    s_nop 1")
    e("    v_max_f32 v5, v5, v6")
    e(f"    v_max_f32 v5, v5, v{vm}")
    e(f"    v_sub_f32 v6, v{vm}, v5")
    e(f"    v_exp_f32 v{val}, v6")
    e(f"    v_mov_b32 v{vm}, v5")
    for r in range(16):
        e(f"    v_sub_f32 v{vS+r}, v{vS+r}, v5")
        e(f"    v_exp_f32 v{vS+r}, v{vS+r}")
    e(f"    v_mov_b32 v{val+1}, v{val}")
    e(f"    v_mul_f32 v{vl}, v{vl}, v{val}")
    for r in range(16):
        e(f"    v_add_f32 v{vl}, v{vl}, v{vS+r}")
    for j in range(8):
        e(f"    v_cvt_pk_bf16_f32 v{vP+j}, v{vS+2*j}, v{vS+2*j+1}")
    for j in range(0,64,2):
        e(f"    v_pk_mul_f32 {vr(vAcc+j,2)}, {vr(vAcc+j,2)}, {vr(val,2)}")
    for mt in range(4):
        for m in range(2):
            for sec in range(2):
                e(f"    ds_read_b64_tr_b16 {vr(vT+8*mt+4*m+2*sec,2)}, v{vT2+2*mt+sec} offset:{m*4096}")
    c("next DMA tile (it+2) into the stage just consumed; out of range -> dummy (OOB) loads keep vmcnt uniform")
    e("    s_add_u32 s28, s26, 2")
    e("    s_lshl_b32 s24, s28, 21")
    e("    s_add_u32 s24, s24, s19")
    e("    s_cmp_lt_u32 s28, 4")
    e("    s_cselect_b32 s24, s24, 0x80000000")
    e("    s_add_u32 s23, s22, s27")
    e("    s_waitcnt lgkmcnt(0)")
    for i in range(8):
        e(f"    s_mov_b32 m0, s23")
        e(f"    s_add_u32 s23, s23, 1024")
        e(f"    buffer_load_dwordx4 v{vDma+(i&3)}, s[8:11], s24 offen nt lds")
        e(f"    s_add_u32 s24, s24, 4096")
    for mt in range(4):
        for m in range(2):
            e(f"    v_mfma_f32_32x32x16_bf16 {vr(vAcc+16*mt,16)}, {vr(vT+8*mt+4*m,4)}, {vr(vP+4*m,4)}, {vr(vAcc+16*mt,16)}")
    e("    s_add_u32 s26, s26, 1")
    e("    s_cmp_lt_u32 s26, 4")
    e("    s_cbranch_scc1 K3_BLOOP")
    stamp(56)
    c("==== B epilogue: merge the two key groups through LDS")
    e("    s_nop 7")
    e("    s_nop 3")
    e(f"    v_mov_b32 v6, v{vl}")
    e("    s_nop 1")
    e(f"    v_permlane32_swap_b32 v{vl}, v6")
    e("    s_nop 1")
    e(f"    v_add_f32 v{vl}, v{vl}, v6")
    e("    s_cbranch_execz K3_SB3")
    e("    s_waitcnt vmcnt(0)")
    e("    s_barrier")
    e("K3_SB3:")
    e("    v_lshlrev_b32 v5, 4, v1")
    e("    s_lshl_b32 s25, s18, 14")
    e("    v_add_u32 v5, s25, v5")
    e("    s_cmp_eq_u32 s30, 0")
    e("    s_cbranch_scc1 K3_BG0")
    for j in range(16):
        e(f"    ds_write_b128 v5, {vr(vAcc+4*j,4)} offset:{j*1024}")
    e(f"    ds_write_b32 v4, v{vm}")
    e(f"    ds_write_b32 v4, v{vl} offset:1024")
    e("    s_waitcnt lgkmcnt(0)")
    e("    s_cbranch_execz K3_BG0")
    e("    s_barrier")
    e("    s_endpgm")
    e("K3_BG0:")
    e("    s_cbranch_execz K3_SB5")
    e("    s_barrier")
    e("K3_SB5:")
    for j in range(16):
        e(f"    ds_read_b128 {vr(vT+4*j,4)}, v5 offset:{j*1024}")
    e(f"    ds_read_b32 v6, v4 offset:16384")
    e(f"    ds_read_b32 v7, v4 offset:{16384+1024}")
    e("    s_waitcnt lgkmcnt(0)")
    e(f"    v_max_f32 v5, v{vm}, v6")
    e(f"    v_sub_f32 v8, v{vm}, v5")
    e(f"    v_sub_f32 v9, v6, v5")
    e(f"    v_exp_f32 v8, v8")
    e(f"    v_exp_f32 v10, v9")
    e(f"    v_mov_b32 v{vm}, v5")
    e(f"    v_mov_b32 v9, v8")
    e(f"    v_mov_b32 v11, v10")
    e(f"    v_mul_f32 v{vl}, v{vl}, v8")
    e(f"    v_fmac_f32 v{vl}, v7, v10")
    for j in range(0,64,2):
        e(f"    v_pk_mul_f32 {vr(vAcc+j,2)}, {vr(vAcc+j,2)}, v[8:9]")
        e(f"    v_pk_fma_f32 {vr(vAcc+j,2)}, {vr(vT+j,2)}, v[10:11], {vr(vAcc+j,2)}")
    c("stats: Bstat[b][split][0/1][h] by wave 0 lanes<32")
    e("    v_lshlrev_b32 v5, 2, v2")
    e("    s_lshl_b32 s23, s2, 8")
    e(f"    s_add_u32 s23, s23, {WS_BSTAT}")
    e("    v_cmp_gt_u32 vcc, 32, v0")
    e("    s_and_saveexec_b64 s[26:27], vcc")
    e(f"    buffer_store_dword v{vm}, v5, s[12:15], s23 offen")
    e(f"    buffer_store_dword v{vl}, v5, s[12:15], s23 offen offset:128")
    e("    s_mov_b64 exec, s[26:27]")
    c("O^T -> bf16 -> LDS [h][128c] (row stride 272) -> coalesced stores to Bpart[b][split][h][c]")
    for mt in range(4):
        for q in range(4):
            a = vAcc + 16*mt + 4*q
            e(f"    v_cvt_pk_bf16_f32 v{vT+2*(4*mt+q)}, v{a}, v{a+1}")
            e(f"    v_cvt_pk_bf16_f32 v{vT+2*(4*mt+q)+1}, v{a+2}, v{a+3}")
    e("    s_mul_i32 s24, s18, 8704")
    e("    s_add_u32 s24, s24, 65536")
    e("    v_mul_u32_u24 v5, 272, v2")
    e("    v_lshl_add_u32 v5, v3, 3, v5")
    e("    v_add_u32 v5, s24, v5")
    for mt in range(4):
        for q in range(4):
            e(f"    ds_write_b64 v5, {vr(vT+2*(4*mt+q),2)} offset:{(32*mt+8*q)*2}")
    e("    v_lshrrev_b32 v6, 4, v1")
    e("    v_and_b32 v7, 15, v1")
    e("    v_mul_u32_u24 v5, 272, v6")
    e("    v_lshl_add_u32 v5, v7, 4, v5")
    e("    v_add_u32 v5, s24, v5")
    e("    v_lshlrev_b32 v6, 10, v6")
    e("    v_lshl_add_u32 v6, v7, 4, v6")
    e("    s_lshl_b32 s23, s2, 15")
    e("    s_lshl_b32 s24, s18, 8")
    e("    s_add_u32 s23, s23, s24")
    e(f"    s_add_u32 s23, s23, {WS_BPART}")
    e("    s_waitcnt lgkmcnt(0)")
    for i in range(8):
        e(f"    ds_read_b128 {vr(vT+4*i,4)}, v5 offset:{i*4*272}")
    e("    s_waitcnt lgkmcnt(0)")
    for i in range(8):
        e(f"    buffer_store_dwordx4 {vr(vT+4*i,4)}, v6, s[12:15], s23 offen")
        if i < 7:
            e("    s_add_u32 s23, s23, 4096")
    stamp(56)
    if "stamp" in EXP:
        e("    s_waitcnt vmcnt(0)")
    stamp(56)
    stamp_flush(12, 6)
    if "warm" in EXP:
        e("    s_cbranch_execz K3_BWARM_DONE")
    e("    s_endpgm")

    e("K3_A:")
    STAMP_N[0] = 0
    stamp(56)
    kload(4, "A_k"); kload(6, "A_v"); kload(28, "ws")
    e("    v_lshrrev_b32 v4, 6, v0")
    e("    v_and_b32 v1, 63, v0")
    e("    v_readfirstlane_b32 s18, v4")
    e("    s_sub_u32 s16, s2, 128")
    e("    s_lshr_b32 s17, s16, 2")
    e("    s_and_b32 s19, s16, 3")
    c("s20 = byte base of this wave's keys: ((b*8+kvh)*8192 + 6144 + 512sx + 64w)*256")
    e("    s_lshl_b32 s20, s17, 21")
    e("    s_lshl_b32 s21, s19, 17")
    e("    s_add_u32 s20, s20, s21")
    e("    s_lshl_b32 s21, s18, 14")
    e("    s_add_u32 s20, s20, s21")
    e(f"    s_add_u32 s20, s20, {6144*256}")
    e("    v_and_b32 v2, 15, v1")
    e("    v_lshrrev_b32 v3, 4, v1")
    e("    s_waitcnt lgkmcnt(0)")
    srd(8, 4, 67108864)
    srd(12, 6, 67108864)
    srd(24, 28, WS_SIZE)
    vQ, vP, vK, vS, vAcc = 16, 32, 64, 128, 144
    c("Q operand: qA[b][(kvh*4 + (l&3))*128 + 32kk + 8g]")
    e("    v_and_b32 v4, 3, v1")
    e("    v_lshlrev_b32 v4, 8, v4")
    e("    v_lshlrev_b32 v5, 4, v3")
    e("    v_add_u32 v4, v4, v5")
    e("    s_lshl_b32 s21, s17, 10")
    e(f"    s_add_u32 s21, s21, {WS_QA}")
    for kk in range(4):
        e(f"    buffer_load_dwordx4 {vr(vQ+4*kk,4)}, v4, s[24:27], s21 offen offset:{kk*64}")
    c("K loads: key = 16T + l15 ; byte = key*256 + kk*64 + g*16")
    e("    v_lshl_add_u32 v6, v2, 8, v5")
    for T in range(4):
        e(f"    s_add_u32 s22, s20, {T*4096}")
        for kk in range(4):
            e(f"    buffer_load_dwordx4 {vr(vK+16*T+4*kk,4)}, v6, s[8:11], s22 offen offset:{kk*64} nt")
    c("V DMA voffsets: rr*256 + ((p ^ ((4u+rr)<<1))<<4)")
    for u in range(2):
        e(f"    v_add_u32 v7, {4*u}, v3")
        e(f"    v_lshlrev_b32 v7, 1, v7")
        e(f"    v_xor_b32 v7, v7, v2")
        e(f"    v_lshlrev_b32 v7, 4, v7")
        e(f"    v_lshl_add_u32 v{10+u}, v3, 8, v7")
    e("    s_lshl_b32 s23, s18, 14")
    e("    s_mov_b32 s22, s23")
    e("    s_mov_b32 s21, s20")
    for i in range(16):
        e(f"    s_mov_b32 m0, s22")
        e(f"    s_add_u32 s22, s22, 1024")
        e(f"    buffer_load_dwordx4 v{10+(i&1)}, s[12:15], s21 offen nt lds")
        e(f"    s_add_u32 s21, s21, 1024")
    stamp(56)
    c("S^T tiles")
    for T in range(4):
        e(f"    s_waitcnt vmcnt({16 + 4*(3-T)})")
        for kk in range(4):
            cc = "0" if kk == 0 else vr(vS+4*T,4)
            e(f"    v_mfma_f32_16x16x32_bf16 {vr(vS+4*T,4)}, {vr(vK+16*T+4*kk,4)}, {vr(vQ+4*kk,4)}, {cc}")
    stamp(56)
    c("tr read base address: r = 4g + (i>>2); chunk0 = (i>>1)&1; f = (r&7)<<1")
    e("    v_lshrrev_b32 v8, 2, v2")
    e("    v_lshl_add_u32 v8, v3, 2, v8")
    e("    v_and_b32 v9, 7, v8")
    e("    v_lshlrev_b32 v9, 1, v9")
    e("    v_bfe_u32 v12, v2, 1, 1")
    e("    v_xor_b32 v9, v9, v12")
    e("    v_lshlrev_b32 v9, 4, v9")
    e("    v_lshl_add_u32 v8, v8, 8, v9")
    e("    v_and_b32 v9, 1, v2")
    e("    v_lshl_add_u32 v8, v9, 3, v8")
    e("    v_add_u32 v8, s23, v8")
    for dt in range(8):
        e(f"    v_xor_b32 v{48+dt}, {dt<<5}, v8")
    for j in range(0,32,2):
        e(f"    v_mov_b64 {vr(vAcc+j,2)}, 0")
    c("scale + max")
    e(f"    s_mov_b32 s22, {f32hex(SCALE_LOG2E)}")
    for r in range(16):
        e(f"    v_mul_f32 v{vS+r}, s22, v{vS+r}")
    e(f"    v_max3_f32 v5, v{vS}, v{vS+1}, v{vS+2}")
    for r in range(3, 15, 2):
        e(f"    v_max3_f32 v5, v5, v{vS+r}, v{vS+r+1}")
    e(f"    v_max_f32 v5, v5, v{vS+15}")
    e("    v_mov_b32 v6, v5")
    e("    s_nop 1")
    e("    v_permlane32_swap_b32 v5, v6")
    e("    s_nop 1")
    e("    v_max_f32 v5, v5, v6")
    e("    ds_swizzle_b32 v6, v5 offset:0x401F")
    e("    s_waitcnt lgkmcnt(0)")
    e("    v_max_f32 v5, v5, v6")
    for r in range(16):
        e(f"    v_sub_f32 v{vS+r}, v{vS+r}, v5")
        e(f"    v_exp_f32 v{vS+r}, v{vS+r}")
    e(f"    v_add_f32 v7, v{vS}, v{vS+1}")
    for r in range(2, 16):
        e(f"    v_add_f32 v7, v7, v{vS+r}")
    e("    v_mov_b32 v6, v7")
    e("    s_nop 1")
    e("    v_permlane32_swap_b32 v7, v6")
    e("    s_nop 1")
    e("    v_add_f32 v7, v7, v6")
    e("    ds_swizzle_b32 v6, v7 offset:0x401F")
    e("    s_waitcnt lgkmcnt(0)")
    e("    v_add_f32 v7, v7, v6")
    for j in range(8):
        e(f"    v_cvt_pk_bf16_f32 v{vP+j}, v{vS+2*j}, v{vS+2*j+1}")
    stamp(56)
    e("    s_waitcnt vmcnt(0)")
    stamp(56)
    vOp = vK
    for KG in range(2):
        for dt in range(8):
            for sec in range(2):
                e(f"    ds_read_b64_tr_b16 {vr(vOp+32*KG+4*dt+2*sec,2)}, v{48+dt} offset:{KG*8192+sec*4096}")
    for KG in range(2):
        e(f"    s_waitcnt lgkmcnt({0 if KG else 15})")
        if KG == 0:
            e(f"    s_waitcnt lgkmcnt(0)")
        for dt in range(8):
            e(f"    v_mfma_f32_16x16x32_bf16 {vr(vAcc+4*dt,4)}, {vr(vOp+32*KG+4*dt,4)}, {vr(vP+4*KG,4)}, {vr(vAcc+4*dt,4)}")
    c("store partial: Apart[b][kvh][split=8sx+w][head][128] f32, lanes l15<4")
    e("    v_lshlrev_b32 v8, 9, v2")
    e("    v_lshl_add_u32 v8, v3, 4, v8")
    e("    s_lshl_b32 s21, s16, 3")
    e("    s_add_u32 s21, s21, s18")
    e("    s_lshl_b32 s22, s21, 11")
    e(f"    s_add_u32 s22, s22, {WS_APART}")
    e("    v_lshlrev_b32 v9, 2, v2")
    e("    s_lshl_b32 s21, s21, 5")
    e(f"    s_add_u32 s21, s21, {WS_ASTAT}")
    e("    v_cmp_gt_u32 vcc, 4, v2")
    e("    s_and_saveexec_b64 s[30:31], vcc")
    e("    s_nop 4")
    for dt in range(8):
        e(f"    buffer_store_dwordx4 {vr(vAcc+4*dt,4)}, v8, s[24:27], s22 offen offset:{dt*64}")
    e("    buffer_store_dword v5, v9, s[24:27], s21 offen")
    e("    buffer_store_dword v7, v9, s[24:27], s21 offen offset:16")
    e("    s_mov_b64 exec, -1")
    stamp(56)
    if "stamp" in EXP:
        e("    s_waitcnt vmcnt(0)")
    stamp(56)
    stamp_flush(24, 6)
    e("K3_END:")
    kend(name, 256)
    return name

def gen_k4():
    name = "k4_comb_kernel"
    kstart(name)
    e("    s_cmp_ge_u32 s2, 320")
    e("    s_cbranch_scc1 K4_END")
    e("    s_cmp_ge_u32 s2, 256")
    e("    s_cbranch_scc1 K4_A")
    kload(4, "B_wuv"); kload(6, "ws")
    e("    s_waitcnt lgkmcnt(0)")
    srd(8, 4, 4194304)
    srd(12, 6, WS_SIZE)
    e("    s_lshr_b32 s16, s2, 3")
    e("    s_and_b32 s17, s2, 7")
    g = RowGemv(16, 4, 64)
    XOFF, REDOFF = 0, 4096
    c("W offsets: (64j + lr)*8192 + h*256 + lc*16")
    e("    v_lshrrev_b32 v1, 4, v0")
    e("    v_lshlrev_b32 v1, 13, v1")
    e("    v_and_b32 v2, 15, v0")
    e("    v_lshlrev_b32 v2, 4, v2")
    e("    v_add_u32 v1, v1, v2")
    e("    s_lshl_b32 s18, s17, 19")
    e("    s_lshl_b32 s19, s16, 8")
    e("    s_add_u32 s18, s18, s19")
    e("    v_add_u32 v1, s18, v1")
    g.issue(8, 1, 16*8192, 18)
    c("stats for (b = wave, h): lane s = lane&31")
    e("    v_lshrrev_b32 v2, 6, v0")
    e("    v_and_b32 v3, 31, v0")
    e("    v_lshlrev_b32 v4, 5, v2")
    e("    v_add_u32 v4, v4, v3")
    e("    v_lshlrev_b32 v4, 8, v4")
    e("    s_lshl_b32 s18, s16, 2")
    e(f"    s_add_u32 s18, s18, {WS_BSTAT}")
    e("    buffer_load_dword v5, v4, s[12:15], s18 offen")
    e("    buffer_load_dword v6, v4, s[12:15], s18 offen offset:128")
    c("partial loads")
    e("    v_lshlrev_b32 v7, 20, v2")
    e("    v_and_b32 v8, 63, v0")
    e("    v_lshlrev_b32 v9, 1, v8")
    e("    v_add_u32 v7, v7, v9")
    e("    s_lshl_b32 s18, s16, 10")
    e("    s_lshl_b32 s19, s17, 7")
    e("    s_add_u32 s18, s18, s19")
    e(f"    s_add_u32 s18, s18, {WS_BPART}")
    for s in range(32):
        e(f"    buffer_load_ushort v{16+s}, v7, s[12:15], s18 offen")
        if s < 31:
            e(f"    s_add_u32 s18, s18, 32768")
    e("    s_waitcnt vmcnt(32)")
    e("    v_mov_b32 v10, v5")
    for off in (0x041F, 0x081F, 0x101F, 0x201F, 0x401F):
        e(f"    ds_swizzle_b32 v11, v10 offset:{off:#x}")
        e("    s_waitcnt lgkmcnt(0)")
        e("    v_max_f32 v10, v10, v11")
    e("    v_sub_f32 v5, v5, v10")
    e("    v_exp_f32 v5, v5")
    e("    v_mul_f32 v6, v6, v5")
    for off in (0x041F, 0x081F, 0x101F, 0x201F, 0x401F):
        e(f"    ds_swizzle_b32 v11, v6 offset:{off:#x}")
        e("    s_waitcnt lgkmcnt(0)")
        e("    v_add_f32 v6, v6, v11")
    e("    v_rcp_f32 v6, v6")
    e("    s_nop 0")
    e("    v_mul_f32 v5, v5, v6")
    e("    v_mov_b32 v12, 0")
    e("    s_waitcnt vmcnt(0)")
    for s in range(32):
        e(f"    v_readlane_b32 s20, v5, {s}")
        e(f"    v_lshlrev_b32 v{16+s}, 16, v{16+s}")
        e(f"    s_nop 0")
        e(f"    v_fmac_f32 v12, s20, v{16+s}")
    c("x[cl][b] -> LDS")
    e("    v_lshlrev_b32 v8, 4, v8")
    e("    v_lshlrev_b32 v9, 2, v2")
    e("    v_add_u32 v8, v8, v9")
    e(f"    ds_write_b32 v8, v12 offset:{XOFF}")
    e("    s_waitcnt lgkmcnt(0)")
    e("    s_barrier")
    g.compute(XOFF, REDOFF, 0)
    c("store ctxp[j][b][h*128+d]: o=t: b=t>>7, d=t&127 ; o=t+256: b+2")
    e("    v_lshrrev_b32 v1, 7, v0")
    e("    v_lshlrev_b32 v1, 14, v1")
    e("    v_and_b32 v2, 127, v0")
    e("    v_lshlrev_b32 v2, 2, v2")
    e("    v_add_u32 v1, v1, v2")
    e("    s_lshl_b32 s18, s17, 16")
    e("    s_lshl_b32 s19, s16, 9")
    e("    s_add_u32 s18, s18, s19")
    e(f"    s_add_u32 s18, s18, {WS_CTXP}")
    e(f"    buffer_store_dword v{g.vT+2}, v1, s[12:15], s18 offen")
    e(f"    buffer_store_dword v{g.vT+3}, v1, s[12:15], s18 offen offset:0")
    L[-1] = f"    s_add_u32 s18, s18, 32768"
    e(f"    buffer_store_dword v{g.vT+3}, v1, s[12:15], s18 offen")
    e("    s_endpgm")
    e("K4_A:")
    kload(6, "ws")
    e("    s_waitcnt lgkmcnt(0)")
    srd(12, 6, WS_SIZE)
    e("    s_sub_u32 s16, s2, 256")
    e("    s_lshl_b32 s16, s16, 8")
    e("    v_add_u32 v1, s16, v0")
    e("    v_lshrrev_b32 v2, 7, v1")
    e("    v_and_b32 v3, 127, v1")
    e("    v_lshrrev_b32 v4, 2, v2")
    e("    v_and_b32 v5, 3, v2")
    c("stat offset: ((b*8+kvh)*32 + s)*32 + hh*4")
    e("    v_lshlrev_b32 v6, 10, v4")
    e("    v_lshlrev_b32 v7, 2, v5")
    e("    v_add_u32 v6, v6, v7")
    e(f"    s_mov_b32 s18, {WS_ASTAT}")
    for s_ in range(32):
        e(f"    buffer_load_dword v{16+s_}, v6, s[12:15], s18 offen offset:{s_*32}")
        e(f"    buffer_load_dword v{48+s_}, v6, s[12:15], s18 offen offset:{s_*32+16}")
    c("partial offset: (((b*8+kvh)*32+s)*4 + hh)*512 + d*4")
    e("    v_lshlrev_b32 v8, 16, v4")
    e("    v_lshlrev_b32 v9, 9, v5")
    e("    v_add_u32 v8, v8, v9")
    e("    v_lshlrev_b32 v9, 2, v3")
    e("    v_add_u32 v8, v8, v9")
    e(f"    s_mov_b32 s18, {WS_APART}")
    for s_ in range(32):
        e(f"    buffer_load_dword v{80+s_}, v8, s[12:15], s18 offen")
        if s_ < 31:
            e("    s_add_u32 s18, s18, 2048")
    e("    s_waitcnt vmcnt(32)")
    e("    v_max_f32 v10, v16, v17")
    for s_ in range(2, 32):
        e(f"    v_max_f32 v10, v10, v{16+s_}")
    e("    v_mov_b32 v11, 0")
    for s_ in range(32):
        e(f"    v_sub_f32 v{16+s_}, v{16+s_}, v10")
        e(f"    v_exp_f32 v{16+s_}, v{16+s_}")
        e("    s_nop 0")
        e(f"    v_fmac_f32 v11, v{16+s_}, v{48+s_}")
    e("    v_rcp_f32 v11, v11")
    e("    v_mov_b32 v12, 0")
    e("    s_waitcnt vmcnt(0)")
    for s_ in range(32):
        e(f"    v_fmac_f32 v12, v{16+s_}, v{80+s_}")
    e("    v_mul_f32 v12, v12, v11")
    e("    v_lshlrev_b32 v1, 2, v1")
    e(f"    s_mov_b32 s18, {WS_OA}")
    e("    buffer_store_dword v12, v1, s[12:15], s18 offen")
    e("K4_END:")
    kend(name, g.vend)
    return name

def gen_k45():
    name = "k45_tail_kernel"
    kstart(name)
    e("    s_cmp_ge_u32 s2, 256")
    e("    s_cbranch_scc1 K45_END")
    kload(4, "A_wo"); kload(6, "B_wo"); kload(8, "B_wuv"); kload(10, "ws")
    e("    v_lshrrev_b32 v4, 6, v0")
    e("    v_and_b32 v1, 63, v0")
    e("    v_readfirstlane_b32 s18, v4")
    e("    v_and_b32 v2, 15, v1")
    e("    v_lshrrev_b32 v3, 4, v1")
    e("    s_lshr_b32 s19, s2, 7")
    e("    s_bfe_u32 s16, s2, 0x50002")
    e("    s_and_b32 s17, s2, 3")
    e("    s_cmp_eq_u32 s19, 0")
    e("    s_waitcnt lgkmcnt(0)")
    e("    s_cselect_b32 s20, s4, s6")
    e("    s_cselect_b32 s21, s5, s7")
    e("    s_mov_b32 s22, 0x400000")
    e("    s_mov_b32 s23, 0x00020000")
    srd(24, 8, 4194304)
    srd(28, 10, WS_SIZE)
    c("Wo rows [128h+32dq, +32) x 1KB -> registers (written to LDS later): wave w rows 8w..8w+7")
    e("    v_lshlrev_b32 v5, 4, v1")
    e("    s_lshl_b32 s32, s16, 17")
    e("    s_lshl_b32 s33, s17, 15")
    e("    s_add_u32 s32, s32, s33")
    e("    s_lshl_b32 s33, s18, 13")
    e("    s_add_u32 s32, s32, s33")
    for i in range(8):
        e(f"    buffer_load_dwordx4 {vr(64+4*i,4)}, v5, s[20:23], s32 offen")
        if i < 7: e("    s_add_u32 s32, s32, 1024")
    e("    s_cmp_eq_u32 s19, 0")
    e("    s_cbranch_scc1 K45_A")
    c("partials -> LDS: wave b: 32 rows (s) of 1KB: Bpart[((b*32+s)*32+h)*1024]")
    e("    s_lshl_b32 s32, s18, 20")
    e("    s_lshl_b32 s33, s16, 10")
    e("    s_add_u32 s32, s32, s33")
    e(f"    s_add_u32 s32, s32, {WS_BPART}")
    e("    s_lshl_b32 s33, s18, 15")
    e("    s_mov_b32 s34, 0")
    e("K45_PDMA:")
    for u in range(4):
        e("    s_mov_b32 m0, s33")
        e("    s_add_u32 s33, s33, 1024")
        e("    buffer_load_dwordx4 v5, s[28:31], s32 offen lds")
        e("    s_add_u32 s32, s32, 32768")
    e("    s_add_u32 s34, s34, 1")
    e("    s_cmp_lt_u32 s34, 8")
    e("    s_cbranch_scc1 K45_PDMA")
    c("w_uv slice -> LDS @131072: [512 c][64B]: instr = 16 rows; wave w rows 128w..")
    e("    v_lshrrev_b32 v6, 2, v1")
    e("    v_and_b32 v7, 3, v1")
    e("    v_lshlrev_b32 v6, 13, v6")
    e("    v_lshl_add_u32 v6, v7, 4, v6")
    e("    s_lshl_b32 s32, s18, 20")
    e("    s_lshl_b32 s33, s16, 8")
    e("    s_add_u32 s32, s32, s33")
    e("    s_lshl_b32 s33, s17, 6")
    e("    s_add_u32 s32, s32, s33")
    e("    s_lshl_b32 s33, s18, 13")
    e("    s_add_u32 s33, s33, 131072")
    for i in range(8):
        e("    s_mov_b32 m0, s33")
        e("    s_add_u32 s33, s33, 1024")
        e("    buffer_load_dwordx4 v6, s[24:27], s32 offen lds")
        e("    s_add_u32 s32, s32, 0x20000")
    c("stats for (b = wave, h): lane s = lane&31")
    e("    v_and_b32 v7, 31, v1")
    e("    v_lshlrev_b32 v7, 8, v7")
    e("    s_lshl_b32 s32, s18, 13")
    e("    s_lshl_b32 s33, s16, 2")
    e("    s_add_u32 s32, s32, s33")
    e(f"    s_add_u32 s32, s32, {WS_BSTAT}")
    e("    buffer_load_dword v8, v7, s[28:31], s32 offen")
    e("    buffer_load_dword v9, v7, s[28:31], s32 offen offset:128")
    e("    s_waitcnt vmcnt(0)")
    e("    v_mov_b32 v10, v8")
    for off in (0x041F, 0x081F, 0x101F, 0x201F, 0x401F):
        e(f"    ds_swizzle_b32 v11, v10 offset:{off:#x}")
        e("    s_waitcnt lgkmcnt(0)")
        e("    v_max_f32 v10, v10, v11")
    e("    v_sub_f32 v8, v8, v10")
    e("    v_exp_f32 v8, v8")
    e("    v_mul_f32 v9, v9, v8")
    for off in (0x041F, 0x081F, 0x101F, 0x201F, 0x401F):
        e(f"    ds_swizzle_b32 v11, v9 offset:{off:#x}")
        e("    s_waitcnt lgkmcnt(0)")
        e("    v_add_f32 v9, v9, v11")
    e("    v_rcp_f32 v9, v9")
    e("    v_mul_f32 v8, v8, v9")
    c("combine: lane handles 8 c's")
    e("    s_lshl_b32 s33, s18, 15")
    e("    v_add_u32 v6, s33, v5")
    for j in range(0,8,2):
        e(f"    v_mov_b64 {vr(16+j,2)}, 0")
    e("    s_mov_b32 s34, 0")
    e("K45_CMB:")
    for u in range(4):
        e(f"    ds_read_b128 {vr(32+4*u,4)}, v6 offset:{u*1024}")
    for u in range(4):
        e(f"    v_readlane_b32 s{36+u}, v8, s34")
        e("    s_add_u32 s34, s34, 1")
    e("    v_add_u32 v6, 4096, v6")
    e("    s_waitcnt lgkmcnt(0)")
    for u in range(4):
        for j in range(4):
            e(f"    v_lshlrev_b32 v10, 16, v{32+4*u+j}")
            e(f"    v_and_b32 v11, 0xffff0000, v{32+4*u+j}")
            e(f"    v_fmac_f32 v{16+2*j}, s{36+u}, v10")
            e(f"    v_fmac_f32 v{17+2*j}, s{36+u}, v11")
    e("    s_cmp_lt_u32 s34, 32")
    e("    s_cbranch_scc1 K45_CMB")
    for j in range(4):
        e(f"    v_cvt_pk_bf16_f32 v{32+j}, v{16+2*j}, v{17+2*j}")
    e("    s_barrier")
    c("ctx_c bf16 [b][512] -> LDS @0 ; Wo tile -> LDS @8192 rows stride 1056")
    e("    s_lshl_b32 s33, s18, 10")
    e("    v_add_u32 v6, s33, v5")
    e("    ds_write_b128 v6, v[32:35]")
    e("    s_branch K45_WOW")
    e("K45_A:")
    c("A: o[b][32dq + d], threads 0..127: b = t>>5, d = t&31 ; kvh = h>>2, hh = h&3")
    e("    v_lshrrev_b32 v6, 5, v0")
    e("    v_and_b32 v7, 31, v0")
    e("    v_and_b32 v6, 3, v6")
    e("    s_lshr_b32 s32, s16, 2")
    e("    s_and_b32 s33, s16, 3")
    c("stat: ((b*8+kvh)*32 + s)*32 + hh*4")
    e("    v_lshlrev_b32 v8, 13, v6")
    e("    s_lshl_b32 s34, s32, 10")
    e("    s_lshl_b32 s35, s33, 2")
    e("    s_add_u32 s34, s34, s35")
    e(f"    s_add_u32 s34, s34, {WS_ASTAT}")
    for s_ in range(32):
        e(f"    buffer_load_dword v{96+s_}, v8, s[28:31], s34 offen offset:{s_*32}")
        e(f"    buffer_load_dword v{128+s_}, v8, s[28:31], s34 offen offset:{s_*32+16}")
    c("partial: (((b*8+kvh)*32+s)*4+hh)*512 + (32dq+d)*4")
    e("    v_lshlrev_b32 v9, 19, v6")
    e("    v_lshl_add_u32 v9, v7, 2, v9")
    e("    s_lshl_b32 s34, s32, 16")
    e("    s_lshl_b32 s35, s33, 9")
    e("    s_add_u32 s34, s34, s35")
    e("    s_lshl_b32 s35, s17, 7")
    e("    s_add_u32 s34, s34, s35")
    e(f"    s_add_u32 s34, s34, {WS_APART}")
    for s_ in range(32):
        e(f"    buffer_load_dword v{160+s_}, v9, s[28:31], s34 offen")
        if s_ < 31: e("    s_add_u32 s34, s34, 2048")
    e("    s_waitcnt vmcnt(32)")
    e("    v_max_f32 v10, v96, v97")
    for s_ in range(2, 32):
        e(f"    v_max_f32 v10, v10, v{96+s_}")
    e("    v_mov_b32 v11, 0")
    for s_ in range(32):
        e(f"    v_sub_f32 v{96+s_}, v{96+s_}, v10")
        e(f"    v_exp_f32 v{96+s_}, v{96+s_}")
        e("    s_nop 0")
        e(f"    v_fmac_f32 v11, v{96+s_}, v{128+s_}")
    e("    v_rcp_f32 v11, v11")
    e("    v_mov_b32 v12, 0")
    e("    s_waitcnt vmcnt(0)")
    for s_ in range(32):
        e(f"    v_fmac_f32 v12, v{96+s_}, v{160+s_}")
    e("    v_mul_f32 v12, v12, v11")
    e("    v_cvt_pk_bf16_f32 v12, v12, v12")
    c("y bf16 [b][32] -> LDS @4096")
    e("    v_lshlrev_b32 v6, 6, v6")
    e("    v_lshl_add_u32 v6, v7, 1, v6")
    e("    v_cmp_gt_u32 vcc, 128, v0")
    e("    s_and_saveexec_b64 s[32:33], vcc")
    e("    ds_write_b16 v6, v12 offset:4096")
    e("    s_mov_b64 exec, s[32:33]")
    e("    s_branch K45_WOW")
    e("K45_WOW:")
    e("    s_mul_i32 s33, s18, 8448")
    e("    v_add_u32 v6, s33, v5")
    for i in range(8):
        e(f"    ds_write_b128 v6, {vr(64+4*i,4)} offset:{8192 + i*1056}")
    e("    s_waitcnt lgkmcnt(0)")
    e("    s_barrier")
    e("    s_cmp_eq_u32 s19, 0")
    e("    s_cbranch_scc1 K45_P3")
    c("B phase 2: ctx[32 d] : wave w K-steps 4w..4w+3 ; A = Wuv^T tiles from LDS @131072 [c][64B]")
    e("    v_lshrrev_b32 v8, 2, v2")
    e("    v_lshl_add_u32 v8, v3, 3, v8")
    e("    v_lshlrev_b32 v8, 6, v8")
    e("    v_and_b32 v9, 3, v2")
    e("    v_lshl_add_u32 v8, v9, 3, v8")
    e("    s_lshl_b32 s33, s18, 13")
    e("    s_add_u32 s33, s33, 131072")
    e("    v_add_u32 v8, s33, v8")
    e("    v_and_b32 v9, 3, v1")
    e("    v_lshlrev_b32 v9, 10, v9")
    e("    v_lshl_add_u32 v9, v3, 4, v9")
    e("    s_lshl_b32 s33, s18, 8")
    e("    v_add_u32 v9, s33, v9")
    for ks in range(4):
        e(f"    ds_read_b128 {vr(32+4*ks,4)}, v9 offset:{ks*64}")
        for tt in range(2):
            e(f"    ds_read_b64_tr_b16 {vr(96+8*ks+4*tt,2)}, v8 offset:{ks*2048 + tt*32}")
            e(f"    ds_read_b64_tr_b16 {vr(98+8*ks+4*tt,2)}, v8 offset:{ks*2048 + tt*32 + 256}")
    e("    s_waitcnt lgkmcnt(0)")
    for ks in range(4):
        for tt in range(2):
            cc = "0" if ks == 0 else vr(16+4*tt,4)
            e(f"    v_mfma_f32_16x16x32_bf16 {vr(16+4*tt,4)}, {vr(96+8*ks+4*tt,4)}, {vr(32+4*ks,4)}, {cc}")
    c("cross-wave reduce via LDS @45056: red[w][b][32 d] f32 (lanes l15<4)")
    e("    v_lshlrev_b32 v8, 7, v2")
    e("    v_lshl_add_u32 v8, v3, 4, v8")
    e("    s_lshl_b32 s33, s18, 9")
    e("    v_add_u32 v8, s33, v8")
    e("    v_cmp_gt_u32 vcc, 4, v2")
    e("    s_and_saveexec_b64 s[32:33], vcc")
    e("    s_nop 4")
    e("    ds_write_b128 v8, v[16:19] offset:45056")
    e("    ds_write_b128 v8, v[20:23] offset:45120")
    e("    s_mov_b64 exec, s[32:33]")
    e("    s_waitcnt lgkmcnt(0)")
    e("    s_barrier")
    c("threads 0..127: (b, d) sum over 4 waves -> bf16 y @4096")
    e("    v_lshlrev_b32 v8, 2, v0")
    for w2 in range(4):
        e(f"    ds_read_b32 v{16+w2}, v8 offset:{45056 + w2*512}")
    e("    s_waitcnt lgkmcnt(0)")
    e("    v_add_f32 v16, v16, v17")
    e("    v_add_f32 v18, v18, v19")
    e("    v_add_f32 v16, v16, v18")
    e("    v_cvt_pk_bf16_f32 v16, v16, v16")
    e("    v_lshlrev_b32 v8, 1, v0")
    e("    v_cmp_gt_u32 vcc, 128, v0")
    e("    s_and_saveexec_b64 s[32:33], vcc")
    e("    ds_write_b16 v8, v16 offset:4096")
    e("    s_mov_b64 exec, s[32:33]")
    e("    s_waitcnt lgkmcnt(0)")
    e("    s_barrier")
    e("K45_P3:")
    c("phase 3: out part: M-tiles 8w..8w+7, K = 32 rows")
    e("    v_and_b32 v9, 3, v1")
    e("    v_lshlrev_b32 v9, 6, v9")
    e("    v_lshl_add_u32 v9, v3, 4, v9")
    e("    ds_read_b128 v[32:35], v9 offset:4096")
    e("    v_lshrrev_b32 v8, 2, v2")
    e("    v_lshl_add_u32 v8, v3, 3, v8")
    e("    v_mul_u32_u24 v8, 1056, v8")
    e("    v_and_b32 v9, 3, v2")
    e("    v_lshl_add_u32 v8, v9, 3, v8")
    e("    s_lshl_b32 s33, s18, 8")
    e("    v_add_u32 v8, s33, v8")
    for mt in range(8):
        e(f"    ds_read_b64_tr_b16 {vr(96+4*mt,2)}, v8 offset:{8192 + mt*32}")
        e(f"    ds_read_b64_tr_b16 {vr(98+4*mt,2)}, v8 offset:{8192 + mt*32 + 4*1056}")
    e("    s_waitcnt lgkmcnt(0)")
    for mt in range(8):
        e(f"    v_mfma_f32_16x16x32_bf16 {vr(128+4*mt,4)}, {vr(96+4*mt,4)}, v[32:35], 0")
    c("store OUTP[wg][b=l15][128w + 16mt + 4g ..] f32")
    e("    v_lshlrev_b32 v8, 11, v2")
    e("    v_lshl_add_u32 v8, v3, 4, v8")
    e("    s_lshl_b32 s32, s2, 13")
    e("    s_lshl_b32 s33, s18, 9")
    e("    s_add_u32 s32, s32, s33")
    e(f"    s_add_u32 s32, s32, {WS_OUTP2}")
    e("    v_cmp_gt_u32 vcc, 4, v2")
    e("    s_and_saveexec_b64 s[34:35], vcc")
    e("    s_nop 4")
    for mt in range(8):
        e(f"    buffer_store_dwordx4 {vr(128+4*mt,4)}, v8, s[28:31], s32 offen offset:{mt*64}")
    e("K45_END:")
    kend(name, 192)
    return name

def gen_k6b():
    name = KNAME
    kstart(name)
    e("    s_cmp_ge_u32 s2, 64")
    e("    s_cbranch_scc1 K6_END")
    kload(4, "out"); kload(6, "ws")
    c("WG handles 64 outputs; thread = (quarter q = t>>6, o = t&63): sums 32 partials")
    e("    v_and_b32 v1, 63, v0")
    e("    v_lshrrev_b32 v2, 6, v0")
    e("    s_lshl_b32 s3, s2, 6")
    e("    v_add_u32 v3, s3, v1")
    e("    v_lshrrev_b32 v4, 10, v3")
    e("    v_bfe_u32 v5, v3, 9, 1")
    e("    v_and_b32 v6, 511, v3")
    e("    v_lshlrev_b32 v4, 11, v4")
    e("    v_lshl_add_u32 v4, v5, 20, v4")
    e("    v_lshl_add_u32 v4, v6, 2, v4")
    e("    v_lshl_add_u32 v4, v2, 18, v4")
    e("    s_waitcnt lgkmcnt(0)")
    srd(8, 4, 8192)
    srd(12, 6, WS_SIZE)
    e(f"    s_mov_b32 s16, {WS_OUTP2}")
    for rc in range(32):
        e(f"    buffer_load_dword v{8+rc}, v4, s[12:15], s16 offen")
        if rc < 31: e(f"    s_add_u32 s16, s16, 8192")
    e("    s_waitcnt vmcnt(0)")
    e("    v_add_f32 v5, v8, v9")
    for rc in range(2, 32):
        e(f"    v_add_f32 v5, v5, v{8+rc}")
    e("    v_lshlrev_b32 v6, 2, v0")
    e("    ds_write_b32 v6, v5")
    e("    s_waitcnt lgkmcnt(0)")
    e("    s_barrier")
    e("    v_lshlrev_b32 v6, 2, v1")
    for q in range(4):
        e(f"    ds_read_b32 v{8+q}, v6 offset:{q*256}")
    e("    s_waitcnt lgkmcnt(0)")
    e("    v_add_f32 v8, v8, v9")
    e("    v_add_f32 v10, v10, v11")
    e("    v_add_f32 v8, v8, v10")
    e("    v_cvt_pk_bf16_f32 v8, v8, v8")
    e("    v_lshlrev_b32 v3, 1, v3")
    e("    v_cmp_gt_u32 vcc, 64, v0")
    e("    s_and_saveexec_b64 s[18:19], vcc")
    e("    buffer_store_short v8, v3, s[8:11], 0 offen")
    e("K6_END:")
    kend(name, 48)
    return name

def gen_k5():
    name = "k5_oproj_kernel"
    kstart(name)
    e("    s_cmp_ge_u32 s2, 128")
    e("    s_cbranch_scc1 K5_END")
    kload(4, "A_wo"); kload(6, "B_wo"); kload(8, "ws")
    e("    s_waitcnt lgkmcnt(0)")
    e("    s_lshr_b32 s3, s2, 6")
    e("    s_cmp_eq_u32 s3, 0")
    e("    s_cselect_b32 s4, s4, s6")
    e("    s_cselect_b32 s5, s5, s7")
    srd(12, 4, 4194304)
    srd(16, 8, WS_SIZE)
    e("    s_bfe_u32 s20, s2, 0x40002")
    e("    s_and_b32 s21, s2, 3")
    g = RowGemv(16, 16, 16)
    XOFF, REDOFF = 0, 4096
    e("    v_lshrrev_b32 v1, 4, v0")
    e("    v_lshlrev_b32 v1, 10, v1")
    e("    v_and_b32 v2, 15, v0")
    e("    v_lshlrev_b32 v2, 4, v2")
    e("    v_add_u32 v1, v1, v2")
    e("    s_lshl_b32 s22, s20, 18")
    e("    s_lshl_b32 s23, s21, 8")
    e("    s_add_u32 s22, s22, s23")
    e("    v_add_u32 v1, s22, v1")
    g.issue(12, 1, 16*1024, 22)
    c("stage x: row r = 256rc + t")
    e("    v_lshlrev_b32 v2, 2, v0")
    e("    s_lshl_b32 s22, s20, 10")
    e("    s_cmp_eq_u32 s3, 0")
    e("    s_cbranch_scc0 K5_XB")
    e(f"    s_add_u32 s22, s22, {WS_OA}")
    for b in range(4):
        e(f"    buffer_load_dword v{8+b}, v2, s[16:19], s22 offen")
        e(f"    s_add_u32 s22, s22, 16384")
    e("    s_waitcnt vmcnt(0)")
    e("    s_branch K5_XDONE")
    e("K5_XB:")
    e(f"    s_add_u32 s22, s22, {WS_CTXP}")
    vtmp = g.vX
    for j in range(8):
        for b in range(4):
            e(f"    buffer_load_dword v{vtmp+4*j+b}, v2, s[16:19], s22 offen")
            e(f"    s_add_u32 s22, s22, 16384")
    e("    s_waitcnt vmcnt(0)")
    for b in range(4):
        e(f"    v_add_f32 v{8+b}, v{vtmp+b}, v{vtmp+4+b}")
        for j in range(2, 8):
            e(f"    v_add_f32 v{8+b}, v{8+b}, v{vtmp+4*j+b}")
    e("K5_XDONE:")
    e("    v_lshlrev_b32 v2, 4, v0")
    e(f"    ds_write_b128 v2, v[8:11] offset:{XOFF}")
    e("    s_waitcnt lgkmcnt(0)")
    e("    s_barrier")
    g.compute(XOFF, REDOFF, 0)
    c("store outp[mat][rc][b][cs*128+col]")
    e("    v_lshrrev_b32 v1, 7, v0")
    e("    v_lshlrev_b32 v1, 11, v1")
    e("    v_and_b32 v2, 127, v0")
    e("    v_lshlrev_b32 v2, 2, v2")
    e("    v_add_u32 v1, v1, v2")
    e("    s_lshl_b32 s22, s3, 17")
    e("    s_lshl_b32 s23, s20, 13")
    e("    s_add_u32 s22, s22, s23")
    e("    s_lshl_b32 s23, s21, 9")
    e("    s_add_u32 s22, s22, s23")
    e(f"    s_add_u32 s22, s22, {WS_OUTP}")
    e(f"    buffer_store_dword v{g.vT+2}, v1, s[16:19], s22 offen")
    e(f"    s_add_u32 s22, s22, 4096")
    e(f"    buffer_store_dword v{g.vT+3}, v1, s[16:19], s22 offen")
    e("K5_END:")
    kend(name, g.vend)
    return name

def gen_k6():
    name = KNAME
    kstart(name)
    e("    s_cmp_ge_u32 s2, 16")
    e("    s_cbranch_scc1 K6_END")
    kload(4, "out"); kload(6, "ws")
    e("    s_waitcnt lgkmcnt(0)")
    srd(8, 4, 8192)
    srd(12, 6, WS_SIZE)
    e("    s_lshl_b32 s3, s2, 8")
    e("    v_add_u32 v1, s3, v0")
    e("    v_lshrrev_b32 v2, 10, v1")
    e("    v_bfe_u32 v3, v1, 9, 1")
    e("    v_and_b32 v4, 511, v1")
    e("    v_lshlrev_b32 v2, 11, v2")
    e("    v_lshlrev_b32 v3, 17, v3")
    e("    v_lshlrev_b32 v4, 2, v4")
    e("    v_add_u32 v2, v2, v3")
    e("    v_add_u32 v2, v2, v4")
    e(f"    s_mov_b32 s16, {WS_OUTP}")
    for rc in range(16):
        e(f"    buffer_load_dword v{8+rc}, v2, s[12:15], s16 offen")
        e(f"    s_add_u32 s16, s16, 8192")
    e("    s_waitcnt vmcnt(0)")
    e("    v_add_f32 v5, v8, v9")
    for rc in range(2, 16):
        e(f"    v_add_f32 v5, v5, v{8+rc}")
    e("    v_cvt_pk_bf16_f32 v5, v5, v5")
    e("    v_lshlrev_b32 v1, 1, v1")
    e("    buffer_store_short v5, v1, s[8:11], 0 offen")
    e("K6_END:")
    kend(name, 32)
    return name

import re
def fix_hazards(lines):
    for ln in lines:
        m = re.search(r"buffer_\S+ .*offset:(\d+)", ln)
        assert not (m and int(m.group(1)) >= 4096), "MUBUF offset too large: " + ln
    res = []
    trans = ("v_exp_f32", "v_rcp_f32", "v_rsq_f32", "v_log_f32", "v_sqrt_f32")
    for i, ln in enumerate(lines):
        res.append(ln)
        t = ln.strip().split()
        if t and t[0] in trans:
            d = t[1].rstrip(",")
            nxt = lines[i+1].strip() if i+1 < len(lines) else ""
            if re.search(r"\b" + d + r"\b", nxt) and nxt.startswith("v_"):
                res.append("    s_nop 0")
    return res

def main():
    hdr = open("concat_heads__sliding_block_cached__compressed_kv_cla__decode.s.ref").read().split("\n")
    hdr = [l for l in hdr if l.startswith(";") and "@launch" not in l]
    launches = [
        ("k1_qproj_kernel", 256, 32768),
        ("k2_qabs_kernel", 144, 0),] if "k1k2" in EXP else [("k12_q_kernel", 160, 136192)]
    launches += [
        ("k3_attn_kernel", 256, 163840),
        ("k4_comb_kernel", 320, 36864),
        ("k5_oproj_kernel", 128, 36864),
        (KNAME, 16, 0),
    ]
    if "oldtail" not in EXP:
        launches = launches[:2] + [("k45_tail_kernel", 256, 163840), (KNAME, 64, 1024)]
    out = list(hdr)
    for n, gx, lds in launches:
        bs = 512 if n == "k3_attn_kernel" else 256
        out.append(f"; @launch kernel={n} grid=({gx},1,1) block=({bs},1,1) lds={lds}")
    out.append('.amdgcn_target "amdgcn-amd-amdhsa--gfx950"')
    gen_k1(); gen_k2(); gen_k12(); gen_k3(); gen_k4(); gen_k5(); (gen_k6() if 'oldtail' in EXP else (gen_k45(), gen_k6b()))
    out += fix_hazards(L)
    dst = sys.argv[1] if len(sys.argv) > 1 else "concat_heads__sliding_block_cached__compressed_kv_cla__decode.s"
    open(dst, "w").write("\n".join(out) + "\n")

if __name__ == "__main__":
    main()
```
